```python
import torch

def _softmax(x, axis=-1):
    return torch.softmax(x, dim=axis)
def _gelu(x):
    return torch.nn.functional.gelu(x, approximate="tanh")
def _silu(x):
    return torch.nn.functional.silu(x)
def _sigmoid(x):
    return torch.sigmoid(x)
def _layernorm(x, axis=-1, eps=1e-5):
    m = x.mean(dim=axis, keepdim=True)
    v = x.var(dim=axis, keepdim=True, unbiased=False)
    return (x - m) / torch.sqrt(v + eps)
def _scatter_add(tgt, idx, src, axis=0):
    return tgt.clone().index_add_(axis, idx, src)
def _segment_sum(src, seg, n):
    out = torch.zeros((n,) + src.shape[1:], dtype=src.dtype)
    return out.index_add_(0, seg, src)
def _pad(x, pw):
    flat = tuple(v for pair in reversed(pw) for v in pair)
    return torch.nn.functional.pad(x, flat)

kernel_name = 'sequential_preLN__softmax_full_mha__dense_activation_relu__prompt'

def setup_inputs():

    _w = (lambda a: (lambda t: t.to(torch.bfloat16) if t.is_floating_point() else t)(torch.as_tensor(a)))
    def _A_setup():
        B, S, D = 1, 2048, 512
        return {
            "x": _w((lambda *s: torch.randn(*s, dtype=torch.bfloat16) * 0.05)(B, S, D)),
            "wqkv": _w((lambda *s: torch.randn(*s, dtype=torch.bfloat16) * 0.05)(D, 3 * D)),
            "wo": _w((lambda *s: torch.randn(*s, dtype=torch.bfloat16) * 0.05)(D, D)),
        }
    _A_in = _A_setup()

    def _B_setup():
        B, S, D, Dff = 1, 2048, 512, 1792
        return {
            "x": _w((lambda *s: torch.randn(*s, dtype=torch.bfloat16) * 0.05)(B, S, D)),
            "w1": _w((lambda *s: torch.randn(*s, dtype=torch.bfloat16) * 0.05)(D, Dff)),
            "w2": _w((lambda *s: torch.randn(*s, dtype=torch.bfloat16) * 0.05)(Dff, D)),
        }
    _B_in = _B_setup()

    return {
        "A_x": _A_in["x"],
        "A_wqkv": _A_in["wqkv"],
        "A_wo": _A_in["wo"],
        "B_x": _B_in["x"],
        "B_w1": _B_in["w1"],
        "B_w2": _B_in["w2"],
    }

def reference(A_x, A_wqkv, A_wo, B_x, B_w1, B_w2):
    def _A_ref(x, wqkv, wo):
        B, S, D = x.shape
        H = 32; Dh = D // H
        qkv = (lambda x, *d: x.permute(*d))((x @ wqkv).reshape(B, S, 3, H, Dh), 2, 0, 3, 1, 4)
        q, k, v = qkv[0], qkv[1], qkv[2]
        scale = Dh ** -0.5
        scores = torch.einsum("bhqd,bhkd->bhqk", q, k) * scale
        p = _softmax(scores, axis=-1)
        o = torch.einsum("bhqk,bhkd->bhqd", p, v)
        return (lambda x, *d: x.permute(*d))(o, 0, 2, 1, 3).reshape(B, S, D) @ wo

    def _B_ref(x, w1, w2):
        h = torch.einsum("bsd,df->bsf", x, w1)
        zero = torch.zeros_like(h)
        h = torch.maximum(h, zero)
        return torch.einsum("bsf,fd->bsd", h, w2)

    x = A_x
    h = x + _A_ref(_layernorm(x, axis=-1), A_wqkv, A_wo)
    h2 = h + _B_ref(_layernorm(h, axis=-1), B_w1, B_w2)
    return h2
```

```python
class Kernel:
    def __init__(self, name, grid, block, lds=0, vgpr=128, agpr=0, sgpr=96, wgy=False):
        self.name = name; self.grid = grid; self.block = block; self.lds = lds
        self.vgpr = vgpr; self.agpr = agpr; self.sgpr = sgpr; self.wgy = wgy
        self.lines = []
        self.note = None
    def __call__(self, s):
        for l in s.split('\n'):
            l = l.strip()
            if l:
                self.lines.append(l if l.endswith(':') else '    ' + l)
    def label(self, s):
        self.lines.append(s + ':')
    def text(self):
        o = [f'.globl {self.name}', '.p2align 8', f'.type {self.name},@function', f'{self.name}:']
        o += self.lines
        return '\n'.join(o) + '\n'
    def desc(self):
        acc = (self.vgpr + 3) // 4 * 4
        nfv = acc + self.agpr if self.agpr else self.vgpr
        o = [f'.amdhsa_kernel {self.name}',
             f'  .amdhsa_next_free_vgpr {nfv}',
             f'  .amdhsa_next_free_sgpr {self.sgpr}',
             f'  .amdhsa_accum_offset {acc}',
             '  .amdhsa_group_segment_fixed_size 0',
             '  .amdhsa_kernarg_size 72',
             '  .amdhsa_user_sgpr_count 2',
             '  .amdhsa_user_sgpr_kernarg_segment_ptr 1',
             '  .amdhsa_system_sgpr_workgroup_id_x 1']
        if self.wgy:
            o.append('  .amdhsa_system_sgpr_workgroup_id_y 1')
        o.append('.end_amdhsa_kernel')
        return '\n'.join(o) + '\n'

def emit(kernels, header='', launches=None):
    launches = launches or kernels
    o = header
    for k in launches:
        g = k.grid; b = k.block
        o += f'; @launch kernel={k.name} grid=({g[0]},{g[1]},{g[2]}) block=({b[0]},{b[1]},{b[2]}) lds={k.lds}\n'
    for k in kernels:
        if k.note:
            o += f'; @note {k.name} {k.note}\n'
    o += '.amdgcn_target "amdgcn-amd-amdhsa--gfx950"\n.text\n'
    for k in kernels:
        o += k.text()
    o += '.section .rodata,"a"\n'
    for k in kernels:
        o += '.p2align 6\n' + k.desc()
    return o
```

```python
import re

TRANS = ('v_exp_f32', 'v_log_f32', 'v_rcp_f32', 'v_rsq_f32', 'v_sqrt_f32', 'v_sin_f32', 'v_cos_f32')

def regs_of(tok):
    tok = tok.strip()
    tok = tok.lstrip('-').strip('|')
    m = re.fullmatch(r'([vsa])\[(\d+):(\d+)\]', tok)
    if m:
        return [(m.group(1), i) for i in range(int(m.group(2)), int(m.group(3)) + 1)]
    m = re.fullmatch(r'([vsa])(\d+)', tok)
    if m:
        return [(m.group(1), int(m.group(2)))]
    if tok in ('vcc', 'vcc_lo', 'vcc_hi'):
        return [('s', 'vcc')]
    if tok in ('exec', 'exec_lo', 'exec_hi'):
        return [('s', 'exec')]
    if tok == 'm0':
        return [('s', 'm0')]
    return []

class Ins:
    def __init__(self, line):
        self.line = line
        t = line.split(';')[0].strip()
        parts = t.split(None, 1)
        self.op = parts[0]
        rest = parts[1] if len(parts) > 1 else ''
        ops = [o.strip() for o in rest.split(',')] if rest else []
        clean = []
        self.mods = ''
        for o in ops:
            p = o.split(None, 1)
            clean.append(p[0] if p else '')
            if len(p) > 1:
                self.mods += ' ' + p[1]
        self.ops = clean
        op = self.op
        self.is_mfma = op.startswith('v_mfma')
        self.is_valu = op.startswith('v_') and not self.is_mfma
        self.is_dot = op.startswith('v_dot')
        self.is_trans = any(op.startswith(x) for x in TRANS)
        self.is_ds = op.startswith('ds_')
        self.is_vmem = op.startswith('buffer_') or op.startswith('global_')
        self.is_salu = op.startswith('s_')
        self.ws = 1
        if op == 's_nop':
            self.ws = int(clean[0]) + 1
        self.dst = []; self.src = []
        R = [regs_of(o) for o in clean]
        if self.is_mfma:
            self.dst = R[0]; self.A = R[1]; self.B = R[2]; self.C = R[3]
            self.src = R[1] + R[2] + R[3]
            self.passes = 8 if '32x32' in op else 4
        elif self.is_valu:
            if op.startswith('v_cmp'):
                self.dst = R[0]; self.src = sum(R[1:], [])
                if op.startswith('v_cmpx'):
                    self.dst = self.dst + [('s', 'exec')]
            elif op.startswith('v_permlane32_swap') or op.startswith('v_permlane16_swap') or op.startswith('v_swap'):
                self.dst = R[0] + R[1]; self.src = R[0] + R[1]
            elif op.startswith('v_add_co') or op.startswith('v_sub_co') or op.startswith('v_addc_co'):
                self.dst = R[0] + R[1]; self.src = sum(R[2:], [])
            elif op in ('v_nop',):
                pass
            else:
                self.dst = R[0]; self.src = sum(R[1:], [])
                if op.startswith('v_dot2c') or op.startswith('v_fmac') or op.startswith('v_mac'):
                    self.src = self.src + R[0]
                if op.startswith('v_cndmask') and len(clean) == 3:
                    self.src = self.src + [('s', 'vcc')]
        elif self.is_ds:
            if op.startswith('ds_read'):
                self.dst = R[0]; self.src = sum(R[1:], [])
            else:
                self.src = sum(R, [])
        elif self.is_vmem:
            self.lds = bool(re.search(r'\blds\b', self.mods + ' ' + ' '.join(ops)))
            if 'load' in op and not self.lds:
                self.dst = R[0]; self.src = sum(R[1:], [])
            else:
                self.src = sum(R, [])
                self.data = R[0] if op.startswith('buffer_') else (R[1] if len(R) > 1 else [])
            if self.lds:
                self.src = self.src + [('s', 'm0')]
        elif self.is_salu:
            if op.startswith('s_cmp') or op.startswith('s_cbranch') or op in ('s_branch', 's_waitcnt', 's_barrier', 's_nop', 's_endpgm', 's_setprio', 's_sleep'):
                self.src = sum(R, [])
            else:
                self.dst = R[0] if R else []
                self.src = sum(R[1:], [])

def ov(a, b):
    return bool(set(a) & set(b))

def need(p, c):
    n = 0
    vd = [r for r in p.dst if r[0] in 'va']
    sd = [r for r in p.dst if r[0] == 's']
    if p.is_valu:
        if c.is_mfma and ov(vd, c.src): n = max(n, 2)
        if c.is_mfma and ('s', 'exec') in sd: n = max(n, 4)
        if c.is_valu:
            if p.is_trans and not c.is_trans and ov(vd, c.src): n = max(n, 1)
            if p.is_trans and c.is_trans and ov(vd, c.src): n = max(n, 1)
            if (c.op.startswith('v_readlane') or c.op.startswith('v_readfirstlane')) and ov(vd, c.src): n = max(n, 1)
            if c.op.startswith('v_permlane') and ov(vd, c.src): n = max(n, 2)
            if ('dpp' in c.op or 'row_' in c.mods or 'quad_perm' in c.mods) and ov(vd, c.src): n = max(n, 2)
            if ov(sd, c.src): n = max(n, 2)
            if c.op.startswith('v_readlane') and ov(sd, c.src): n = max(n, 4)
        if c.is_vmem and ov(sd, c.src): n = max(n, 5)
        if p.is_dot:
            if c.op == p.op and c.is_dot:
                ab = sum([regs_of(o) for o in c.ops[1:3]], [])
                if ov(vd, ab): n = max(n, 3)
            elif ov(vd, c.src) or ov(vd, c.dst):
                n = max(n, 3)
    if p.is_mfma:
        big = 12 if p.passes == 8 else 8
        if c.is_mfma:
            if ov(p.dst, c.A + c.B): n = max(n, big)
            if ov(p.dst, c.C) and not (c.C == p.dst and c.passes == p.passes): n = max(n, big - 2)
            if ov(p.dst, c.dst) and not (c.C == p.dst): n = max(n, big - 2)
        elif c.is_valu or c.is_vmem or c.is_ds:
            if ov(p.dst, c.src) or ov(p.dst, c.dst): n = max(n, big)
        if c.is_valu and ov(p.C, c.dst): n = max(n, 7 if p.passes == 8 else 3)
    if p.is_salu and ('s', 'm0') in p.dst and c.is_vmem and getattr(c, 'lds', False): n = max(n, 1)
    if p.is_vmem and 'store' in p.op and ('x4' in p.op or 'x3' in p.op):
        if ov(p.data, c.dst): n = max(n, 2 if c.is_valu else 1)
    return n

def check(name, lines):
    ins = []; labels = {}
    for l in lines:
        t = l.split(';')[0].strip()
        if not t: continue
        if t.endswith(':'):
            labels[t[:-1]] = len(ins); continue
        if t.startswith('.'): continue
        ins.append(Ins(t))
    probs = []
    def scan(seq, tag):
        for i, c in enumerate(seq):
            d = 0
            for j in range(i - 1, max(-1, i - 24), -1):
                p = seq[j]
                n = need(p, c)
                if n > d:
                    probs.append(f'{name}{tag}: need {n} have {d}: [{p.line}] -> [{c.line}]')
                d += p.ws
                if p.op in ('s_branch', 's_endpgm'): break
                if d >= 20: break
    scan(ins, '')
    for i, c in enumerate(ins):
        if c.op.startswith('s_cbranch') or c.op == 's_branch':
            tgt = labels.get(c.ops[0])
            if tgt is None: continue
            pre = ins[max(0, i - 24): i + 1]
            for j in range(len(pre) - 2, -1, -1):
                if pre[j].op in ('s_branch', 's_endpgm'):
                    pre = pre[j + 1:]; break
            post = ins[tgt: tgt + 24]
            seq = pre + post
            for a, cc in enumerate(seq):
                if a < len(pre): continue
                d = 0
                for j in range(a - 1, -1, -1):
                    p = seq[j]
                    if j < len(pre):
                        n = need(p, cc)
                        if n > d:
                            probs.append(f'{name} (branch {c.line}): need {n} have {d}: [{p.line}] -> [{cc.line}]')
                    d += p.ws
                    if d >= 20: break
                    if j >= len(pre) and p.op in ('s_branch', 's_endpgm'): break
                if cc.op in ('s_branch', 's_endpgm'): break
    return probs
```

```python
import sys, struct, math
sys.path.insert(0, 'tools')
from asmlib import *
import hazard

MB = 1 << 20
WS_Q, WS_K, WS_V, WS_O, WS_H, WS_H1 = 0, 2 * MB, 4 * MB, 6 * MB, 8 * MB, 10 * MB
H1_SIZE = 2048 * 1792 * 2
E = 131072

def fbits(x):
    return '0x%08x' % struct.unpack('<I', struct.pack('<f', x))[0]

def vr(b, n=4):
    return f'v[{b}:{b+n-1}]'

MFMA = 'v_mfma_f32_32x32x16_bf16'

def head(k, nwg):
    k(f'''
    s_cmp_ge_u32 s2, {nwg}
    s_cbranch_scc1 {k.name}_end
    s_load_dwordx16 s[16:31], s[0:1], 0
    s_load_dwordx2 s[32:33], s[0:1], 64
    v_lshrrev_b32 v2, 6, v0
    v_and_b32 v1, 63, v0
    v_readfirstlane_b32 s3, v2
    s_and_b32 s40, s2, 7
    s_lshr_b32 s41, s2, 3
    ''')

def tail(k):
    k.label(f'{k.name}_end')
    k('s_endpgm')

def w_addr(k, dst, tmp):
    k(f'''
    v_and_b32 v{tmp}, 44, v1
    v_lshlrev_b32 v{dst}, 5, v{tmp}
    v_and_b32 v{tmp}, 16, v1
    v_lshl_or_b32 v{dst}, v{tmp}, 1, v{dst}
    v_and_b32 v{tmp}, 2, v1
    v_lshl_or_b32 v{dst}, v{tmp}, 2, v{dst}
    v_and_b32 v{tmp}, 1, v1
    v_lshl_or_b32 v{dst}, v{tmp}, 4, v{dst}
    v_and_b32 v{tmp}, 8, v1
    v_lshl_or_b32 v{dst}, v{tmp}, 3, v{dst}
    s_lshl_b32 s7, s5, 6
    v_xor_b32 v{dst}, s7, v{dst}
    ''')

def w_lane_part(k, dst, tmp, pitch):
    k(f'''
    v_lshrrev_b32 v{tmp}, 3, v1
    v_mul_u32_u24 v{dst}, {pitch}, v{tmp}
    v_and_b32 v{tmp}, 16, v1
    v_lshrrev_b32 v{tmp}, 2, v{tmp}
    v_xor_b32 v{tmp}, v{tmp}, v1
    v_and_b32 v{tmp}, 7, v{tmp}
    v_lshl_add_u32 v{dst}, v{tmp}, 4, v{dst}
    ''')

def vo_chain(k, vo, vx, sA, sB):
    for i in range(1, 8):
        s = sB if i == 4 else sA
        if vx is None:
            k(f'v_add_u32 v{vo+i}, s{s}, v{vo+i-1}')
        else:
            k(f'v_xad_u32 v{vo+i}, v{vo+i-1}, v{vx}, s{s}')

def dma_issue(k, vo, wrap=True):
    k('s_mov_b32 m0, s14')
    k('s_add_u32 s7, s14, 32768')
    for i in range(4):
        k(f'buffer_load_dwordx4 v{vo+i}, s[8:11], s12 offen offset:{i*1024} lds')
    k('s_add_u32 m0, s14, 4096')
    k('s_and_b32 s14, s7, 0x1ffff')
    for i in range(4):
        k(f'buffer_load_dwordx4 v{vo+4+i}, s[8:11], s12 offen offset:{i*1024} lds')
    k('s_add_u32 s12, s12, s13')

def srd(k, d, lo, hi, off, nrec):
    if off:
        k(f's_add_u32 s{d}, s{lo}, {off}\ns_addc_u32 s{d+1}, s{hi}, 0')
    else:
        k(f's_mov_b32 s{d}, s{lo}\ns_mov_b32 s{d+1}, s{hi}')
    k(f's_mov_b32 s{d+2}, {nrec}\ns_mov_b32 s{d+3}, 0x00020000')

def unpack8(k, dst, src):
    for i in range(4):
        k(f'v_lshlrev_b32 v{dst+2*i}, 16, v{src+i}')
        k(f'v_and_b32 v{dst+2*i+1}, 0xffff0000, v{src+i}')

def ln_gemm(name, which):
    K1 = which == 1
    nwg = 256 if K1 else 224
    TX, TW = (1, 3) if K1 else (2, 2)
    NACC = TX * TW
    VO, XA, WA, ST, AD, F, ACC = 8, 16, 20, 22, 28, 32, 96
    k = Kernel(name, (nwg, 1, 1), (256, 1, 1), lds=E + 4096, vgpr=ACC + 16 * NACC, sgpr=64)
    head(k, nwg)
    k('''
    s_and_b32 s4, s3, 1
    s_lshr_b32 s5, s3, 1
    s_xor_b32 s6, s4, s5
    s_lshl_b32 s14, s3, 13
    s_mov_b32 s34, 0x8000
    s_mov_b32 s35, 0x3f803f80
    ''')
    k(f'''
    v_mov_b32 v2, 0
    v_mov_b32 v3, 0
    v_lshlrev_b32 v4, 3, v0
    v_add_u32 v4, {E}, v4
    ds_write_b64 v4, v[2:3]
    ''')
    w_addr(k, WA, 2)
    k(f'''
    s_lshl_b32 s7, s6, 12
    v_add_u32 v{WA}, s7, v{WA}
    v_xor_b32 v{WA+1}, 0x1000, v{WA}
    ''')
    if K1:
        k(f'''
        v_lshrrev_b32 v2, 1, v1
        v_lshrrev_b32 v3, 5, v1
        v_xor_b32 v2, v2, v3
        v_and_b32 v2, 7, v2
        v_and_b32 v3, 31, v1
        v_lshlrev_b32 v3, 7, v3
        v_lshl_or_b32 v2, v2, 4, v3
        s_lshl_b32 s7, s4, 12
        s_lshl_b32 s42, s6, 6
        s_or_b32 s7, s7, s42
        v_xor_b32 v{XA}, s7, v2
        v_xor_b32 v{XA+1}, 32, v{XA}
        v_xor_b32 v{XA+2}, 64, v{XA}
        v_xor_b32 v{XA+3}, 0x60, v{XA}
        ''')
        k(f'''
        s_cmp_eq_u32 s3, 0
        s_cbranch_scc1 {name}_rx
        ''')
        w_lane_part(k, VO, 2, 3072)
        k(f'''
        v_mov_b32 v5, 0
        s_movk_i32 s44, {24576-1024}
        s_movk_i32 s45, {24576+3072}
        s_mov_b32 s13, {64*3072}
        s_sub_u32 s12, s3, 1
        s_lshl_b32 s12, s12, 10
        s_lshl_b32 s7, s40, 7
        s_add_u32 s12, s12, s7
        s_waitcnt lgkmcnt(0)
        ''')
        srd(k, 8, 18, 19, 0, 512 * 1536 * 2)
        k(f's_branch {name}_rj')
        k.label(f'{name}_rx')
        k(f'''
        v_lshrrev_b32 v2, 3, v1
        v_lshlrev_b32 v{VO}, 10, v2
        v_lshrrev_b32 v2, 4, v1
        v_xor_b32 v2, v2, v1
        v_and_b32 v2, 7, v2
        v_lshl_add_u32 v{VO}, v2, 4, v{VO}
        v_mov_b32 v5, 64
        s_movk_i32 s44, {8192-1024}
        s_movk_i32 s45, {8192+3072}
        s_movk_i32 s13, 128
        s_lshl_b32 s12, s41, 16
        s_waitcnt lgkmcnt(0)
        ''')
        srd(k, 8, 16, 17, 0, 2048 * 512 * 2)
        k.label(f'{name}_rj')
        vo_chain(k, VO, 5, 44, 45)
    else:
        k(f'''
        s_cmp_ge_u32 s41, 14
        s_cselect_b32 s42, 1, 0
        s_cselect_b32 s7, 14, 0
        s_sub_u32 s43, s41, s7
        s_lshl_b32 s7, s40, 1
        s_add_u32 s42, s42, s7
        v_lshlrev_b32 v2, 4, v1
        s_lshl_b32 s7, s4, 13
        s_lshl_b32 s46, s6, 11
        s_or_b32 s7, s7, s46
        v_or_b32 v{XA}, s7, v2
        v_xor_b32 v{XA+1}, 0x800, v{XA}
        s_cmp_lt_u32 s3, 2
        s_cbranch_scc1 {name}_rx
        ''')
        w_lane_part(k, VO, 2, 3584)
        k(f'''
        s_movk_i32 s44, {8*3584-1024}
        s_movk_i32 s45, {8*3584+3072}
        s_mov_b32 s13, {64*3584}
        s_sub_u32 s12, s3, 2
        s_lshl_b32 s12, s12, 7
        s_lshl_b32 s7, s43, 8
        s_add_u32 s12, s12, s7
        s_waitcnt lgkmcnt(0)
        ''')
        srd(k, 8, 24, 25, 0, 512 * 1792 * 2)
        k(f's_branch {name}_rj')
        k.label(f'{name}_rx')
        k(f'''
        v_mov_b32 v{VO}, v2
        s_movk_i32 s44, 0
        s_mov_b32 s45, 32768
        s_movk_i32 s13, 4096
        s_lshl_b32 s12, s42, 17
        s_lshl_b32 s7, s3, 16
        s_add_u32 s12, s12, s7
        s_waitcnt lgkmcnt(0)
        ''')
        srd(k, 8, 32, 33, WS_H, 2 * MB)
        k.label(f'{name}_rj')
        vo_chain(k, VO, None, 44, 45)
    for c in range(3):
        dma_issue(k, VO)
    for r in list(range(ST, ST + 6)) + list(range(F + 32, F + 64)) + list(range(ACC, ACC + 16 * NACC)):
        k(f'v_mov_b32 v{r}, 0')
    k('s_mov_b32 s15, 0')

    FX = lambda s, j: F + 16 * s + 4 * j
    FW = lambda s, p: F + 16 * s + 4 * TX + 4 * p
    nrd = TX + 2 * TW
    WBASE = 8192 if K1 else 16384
    def reads(s):
        for j in range(TX):
            if K1:
                k(f'ds_read_b128 {vr(FX(s, j))}, v{XA+s}')
            else:
                k(f'ds_read_b128 {vr(FX(s, j))}, v{XA+(s>>1)} offset:{j*4096+(s&1)*1024}')
        for p in range(TW):
            for sec in range(2):
                k(f'ds_read_b64_tr_b16 {vr(FW(s, p)+2*sec, 2)}, v{WA+(s>>1)} offset:{WBASE+p*8192+(s&1)*2048+sec*512}')
    def mfmas(s):
        for j in range(TX):
            for p in range(TW):
                a = ACC + 16 * (j * TW + p)
                if K1 and p == 2:
                    k(f'{MFMA} {vr(a,16)}, {vr(FX(s,j))}, {vr(FW(s,p))}, {vr(a,16)}')
                else:
                    k(f'{MFMA} {vr(a,16)}, {vr(FW(s,p))}, {vr(FX(s,j))}, {vr(a,16)}')
    def dots():
        for s in (2, 3):
            for i in range(4):
                for j in range(TX):
                    x = FX(s, j) + i
                    k(f'v_dot2c_f32_bf16 v{ST+2*j}, s35, v{x}')
                    k(f'v_dot2c_f32_bf16 v{ST+2*j+1}, v{x}, v{x}')
                for p in range(TW):
                    k(f'v_dot2c_f32_bf16 v{ST+2*TX+p}, s35, v{FW(s,p)+i}')
    k.label(f'{name}_loop')
    k('s_waitcnt vmcnt(16)\ns_barrier')
    reads(0); reads(1)
    k('s_cmp_lt_u32 s15, 5\ns_cselect_b32 s10, s10, 0')
    dma_issue(k, VO)
    dots()
    reads(2)
    k(f's_waitcnt lgkmcnt({2*nrd})')
    mfmas(0)
    reads(3)
    k(f's_waitcnt lgkmcnt({2*nrd})')
    mfmas(1)
    nxa = 4 if K1 else 2
    for r in list(range(XA, XA + nxa)) + [WA, WA + 1]:
        k(f'v_xor_b32 v{r}, s34, v{r}')
    k('s_xor_b32 s34, s34, 0x10000')
    k(f's_waitcnt lgkmcnt({nrd})')
    mfmas(2)
    k('s_add_u32 s15, s15, 1\ns_cmp_lt_u32 s15, 8')
    k('s_waitcnt lgkmcnt(0)')
    mfmas(3)
    k(f's_cbranch_scc1 {name}_loop')
    dots()
    k(f'''
    s_waitcnt vmcnt(0)
    v_lshlrev_b32 v2, 2, v1
    v_and_b32 v3, 31, v1
    v_lshlrev_b32 v3, 2, v3
    v_lshrrev_b32 v4, 5, v1
    v_lshlrev_b32 v4, 4, v4
    ''')
    for p in range(3):
        k(f'v_permlane32_swap_b32 v{ST+2*p}, v{ST+2*p+1}')
    if K1:
        k(f'''
        s_lshl_b32 s7, s4, 8
        s_add_u32 s46, s7, {E}
        s_lshl_b32 s7, s5, 9
        s_add_u32 s47, s7, {E+512}
        v_add_f32 v{ST}, v{ST}, v{ST+1}
        v_add_f32 v{ST+2}, v{ST+2}, v{ST+3}
        v_add_f32 v{ST+4}, v{ST+4}, v{ST+5}
        v_add_u32 v5, s46, v2
        v_add_u32 v6, s47, v2
        ds_add_f32 v5, v{ST}
        ds_add_f32 v6, v{ST+2}
        ds_add_f32 v6, v{ST+4} offset:256
        v_add_u32 v5, s46, v3
        v_add_u32 v6, s47, v4
        v_add_u32 v7, s47, v3
        s_waitcnt lgkmcnt(0)
        s_barrier
        ds_read2_b32 v[{ST}:{ST+1}], v5 offset1:32
        ds_read_b32 v{ST+2}, v7 offset:256
        ''')
        for t in range(2):
            for q in range(4):
                k(f'ds_read_b128 {vr(F+16*t+4*q)}, v6 offset:{t*128+q*32}')
        srd(k, 36, 32, 33, 0, 6 * MB)
        k(f'''
        s_lshl_b32 s7, s40, 2
        s_lshl_b32 s48, s5, 1
        s_add_u32 s7, s7, s48
        s_lshl_b32 s7, s7, 6
        s_lshl_b32 s48, s41, 1
        s_add_u32 s48, s48, s4
        s_add_u32 s7, s7, s48
        s_lshl_b32 s48, s7, 10
        s_add_u32 s49, s48, 0x10000
        s_add_u32 s50, s48, {WS_K}
        s_add_u32 s51, s48, {WS_K+0x10000}
        s_add_u32 s52, s48, {WS_V}
        s_lshl_b32 s53, s3, 8
        s_add_u32 s53, s53, {E+2048}
        v_lshlrev_b32 v8, 4, v1
        v_and_b32 v9, 16, v1
        v_lshlrev_b32 v9, 12, v9
        v_and_b32 v10, 15, v1
        v_lshl_or_b32 v9, v10, 4, v9
        v_lshl_or_b32 v9, v4, 4, v9
        v_add_u32 v10, s53, v2
        v_add_u32 v11, s53, v4
        v_cmp_gt_u32 vcc, 32, v1
        s_waitcnt lgkmcnt(9)
        v_mul_f32 v{ST}, {fbits(-1.0/512)}, v{ST}
        v_mul_f32 v{ST+1}, {fbits(1.0/512)}, v{ST+1}
        v_fma_f32 v{ST+1}, -v{ST}, v{ST}, v{ST+1}
        v_max_f32 v{ST+1}, 0, v{ST+1}
        v_add_f32 v{ST+1}, {fbits(1e-5)}, v{ST+1}
        v_rsq_f32 v{ST+4}, v{ST+1}
        s_nop 0
        v_cndmask_b32 v12, v{ST}, v{ST+4}, vcc
        ds_write_b32 v10, v12
        v_mul_f32 v14, {fbits(0.25*math.log2(math.e))}, v{ST+4}
        s_waitcnt lgkmcnt(0)
        ''')
        for q in range(8):
            k(f'ds_read_b128 {vr(F+32+4*q)}, v11 offset:{q*32}')
        for t, sc, so in ((0, 14, (48, 49)), (1, ST + 4, (50, 51))):
            a = ACC + 16 * t; c = F + 16 * t
            for i in range(8):
                k(f'v_pk_fma_f32 {vr(a+2*i,2)}, {vr(c+2*i,2)}, {vr(ST,2)}, {vr(a+2*i,2)} op_sel_hi:[1,0,1]')
            for i in range(8):
                k(f'v_pk_mul_f32 {vr(a+2*i,2)}, {vr(a+2*i,2)}, {vr(sc,2)} op_sel_hi:[1,0]')
            for i in range(8):
                k(f'v_cvt_pk_bf16_f32 v{c+i}, v{a+2*i}, v{a+2*i+1}')
            for j in range(2):
                k(f'buffer_store_dwordx4 {vr(c+4*j)}, v8, s[36:39], s{so[j]} offen')
        a = ACC + 32
        k('s_waitcnt lgkmcnt(0)')
        for i in range(8):
            k(f'v_pk_fma_f32 {vr(a+2*i,2)}, {vr(F+48+2*i,2)}, {vr(ST+2,2)}, {vr(a+2*i,2)} op_sel_hi:[1,0,1]')
        for i in range(8):
            k(f'v_pk_mul_f32 {vr(a+2*i,2)}, {vr(a+2*i,2)}, {vr(F+32+2*i,2)}')
        for i in range(8):
            k(f'v_cvt_pk_bf16_f32 v{F+48+i}, v{a+2*i}, v{a+2*i+1}')
        for j in range(2):
            k(f'buffer_store_dwordx4 {vr(F+48+4*j)}, v9, s[36:39], s52 offen offset:{j*512}')
    else:
        k(f'''
        s_lshl_b32 s7, s4, 9
        s_add_u32 s46, s7, {E}
        s_lshl_b32 s7, s5, 8
        s_add_u32 s47, s7, {E+1024}
        v_add_f32 v{ST}, v{ST}, v{ST+1}
        v_add_f32 v{ST+2}, v{ST+2}, v{ST+3}
        v_add_f32 v{ST+4}, v{ST+4}, v{ST+5}
        v_add_u32 v5, s46, v2
        v_add_u32 v6, s47, v2
        ds_add_f32 v5, v{ST}
        ds_add_f32 v5, v{ST+2} offset:256
        ds_add_f32 v6, v{ST+4}
        v_add_u32 v5, s46, v3
        v_add_u32 v6, s47, v4
        s_waitcnt lgkmcnt(0)
        s_barrier
        ds_read2_b32 v[{ST}:{ST+1}], v5 offset1:32
        ds_read2_b32 v[{ST+2}:{ST+3}], v5 offset0:64 offset1:96
        ''')
        for t in range(2):
            for q in range(4):
                k(f'ds_read_b128 {vr(F+16*t+4*q)}, v6 offset:{t*128+q*32}')
        srd(k, 36, 32, 33, WS_H1, H1_SIZE)
        k(f'''
        s_lshl_b32 s7, s42, 2
        s_lshl_b32 s48, s4, 1
        s_add_u32 s7, s7, s48
        s_mul_i32 s7, s7, 112
        s_lshl_b32 s48, s43, 3
        s_add_u32 s7, s7, s48
        s_lshl_b32 s48, s5, 1
        s_add_u32 s7, s7, s48
        s_lshl_b32 s48, s7, 10
        s_add_u32 s49, s48, 4096
        s_add_u32 s50, s48, {112*1024}
        s_add_u32 s51, s48, {112*1024+4096}
        v_lshlrev_b32 v8, 4, v1
        s_waitcnt lgkmcnt(8)
        ''')
        for j in range(2):
            m = ST + 2 * j; r = 10 + 2 * j
            k(f'''
            v_mul_f32 v{m}, {fbits(-1.0/512)}, v{m}
            v_mul_f32 v{m+1}, {fbits(1.0/512)}, v{m+1}
            v_fma_f32 v{m+1}, -v{m}, v{m}, v{m+1}
            v_max_f32 v{m+1}, 0, v{m+1}
            v_add_f32 v{m+1}, {fbits(1e-5)}, v{m+1}
            v_rsq_f32 v{r}, v{m+1}
            ''')
        k('s_waitcnt lgkmcnt(0)')
        for j in range(2):
            for p in range(2):
                a = ACC + 16 * (j * 2 + p); c = F + 16 * p; o = F + 32 + 8 * (j * 2 + p)
                for i in range(8):
                    k(f'v_pk_fma_f32 {vr(a+2*i,2)}, {vr(c+2*i,2)}, {vr(ST+2*j,2)}, {vr(a+2*i,2)} op_sel_hi:[1,0,1]')
                for i in range(8):
                    k(f'v_pk_mul_f32 {vr(a+2*i,2)}, {vr(a+2*i,2)}, {vr(10+2*j,2)} op_sel_hi:[1,0]')
                for i in range(8):
                    k(f'v_cvt_pk_bf16_f32 v{o+i}, v{a+2*i}, v{a+2*i+1}')
                for i in range(8):
                    k(f'v_pk_max_i16 v{o+i}, v{o+i}, 0')
                for jj in range(2):
                    k(f'buffer_store_dwordx4 {vr(o+4*jj)}, v8, s[36:39], s{48+2*j+p} offen offset:{jj*1024}')
    tail(k)
    return k

def res_gemm(name, which):
    K3 = which == 3
    VO, XA, WA, RS, F, ACC = 8, 16, 17, 20, 32, 96
    NC = 4 if K3 else 14
    k = Kernel(name, (256, 1, 1), (256, 1, 1), lds=E, vgpr=ACC + 16, sgpr=64)
    head(k, 256)
    k('''
    s_and_b32 s4, s3, 1
    s_lshr_b32 s5, s3, 1
    s_lshl_b32 s14, s3, 13
    s_mov_b32 s34, 0x8000
    s_lshr_b32 s42, s41, 3
    s_lshl_b32 s7, s40, 2
    s_add_u32 s42, s42, s7
    s_and_b32 s43, s41, 7
    ''')
    w_addr(k, WA, 2)
    k(f'''
    v_lshlrev_b32 v7, 4, v1
    s_lshl_b32 s7, s4, 13
    v_or_b32 v{XA}, s7, v7
    v_and_b32 v2, 31, v1
    v_lshlrev_b32 v6, 10, v2
    v_lshrrev_b32 v2, 5, v1
    v_lshl_or_b32 v6, v2, 4, v6
    s_lshl_b32 s46, s42, 1
    s_add_u32 s46, s46, s4
    s_lshl_b32 s47, s43, 1
    s_add_u32 s47, s47, s5
    s_lshl_b32 s48, s46, 15
    s_lshl_b32 s7, s47, 6
    s_add_u32 s49, s48, s7
    s_lshl_b32 s7, s47, 11
    s_add_u32 s48, s48, s7
    s_cmp_lt_u32 s3, 2
    s_cbranch_scc1 {name}_rx
    ''')
    w_lane_part(k, VO, 2, 1024)
    k(f'''
    s_movk_i32 s44, {8192-1024}
    s_movk_i32 s45, {8192+3072}
    s_mov_b32 s13, {128*1024}
    s_sub_u32 s12, s3, 2
    s_lshl_b32 s12, s12, 16
    s_lshl_b32 s7, s43, 7
    s_add_u32 s12, s12, s7
    s_waitcnt lgkmcnt(0)
    ''')
    if K3:
        srd(k, 8, 20, 21, 0, 512 * 512 * 2)
    else:
        srd(k, 8, 26, 27, 0, 1792 * 512 * 2)
    k(f's_branch {name}_rj')
    k.label(f'{name}_rx')
    k(f'''
    v_mov_b32 v{VO}, v7
    s_movk_i32 s44, 0
    s_movk_i32 s45, 4096
    s_movk_i32 s13, 8192
    s_lshl_b32 s12, s42, 1
    s_add_u32 s12, s12, s3
    s_mul_i32 s12, s12, {32768 if K3 else 112*1024}
    s_waitcnt lgkmcnt(0)
    ''')
    if K3:
        srd(k, 8, 32, 33, WS_O, 2 * MB)
    else:
        srd(k, 8, 32, 33, WS_H1, H1_SIZE)
    k.label(f'{name}_rj')
    vo_chain(k, VO, None, 44, 45)
    if K3:
        srd(k, 36, 16, 17, 0, 2 * MB)
        for j in range(2):
            k(f'buffer_load_dwordx4 {vr(RS+4*j)}, v6, s[36:39], s49 offen offset:{j*32}')
    else:
        srd(k, 36, 32, 33, WS_H, 2 * MB)
        for j in range(2):
            k(f'buffer_load_dwordx4 {vr(RS+4*j)}, v7, s[36:39], s48 offen offset:{j*1024}')
    npro = 4 if K3 else 3
    for c in range(npro):
        dma_issue(k, VO)
    if K3:
        srd(k, 36, 32, 33, WS_H, 2 * MB)
    else:
        srd(k, 36, 28, 29, 0, 2 * MB)
    k(f's_waitcnt vmcnt({8*npro})')
    unpack8(k, ACC, RS)
    unpack8(k, ACC + 8, RS + 4)
    k('s_mov_b32 s15, 0')
    def reads(s):
        k(f'ds_read_b128 {vr(F+8*s)}, v{XA} offset:{s*1024}')
        for sec in range(2):
            k(f'ds_read_b64_tr_b16 {vr(F+8*s+4+2*sec, 2)}, v{WA} offset:{16384+s*2048+sec*512}')
    def body(vm, issue, last):
        k(f's_waitcnt vmcnt({vm})\ns_barrier')
        for s in range(4):
            reads(s)
        if issue:
            k(f's_cmp_lt_u32 s15, {NC-3}\ns_cselect_b32 s10, s10, 0')
            dma_issue(k, VO)
        for s in range(8):
            left = min(8, s + 4) - s - 1
            k(f's_waitcnt lgkmcnt({3*left})')
            k(f'{MFMA} {vr(ACC,16)}, {vr(F+8*s+4)}, {vr(F+8*s)}, {vr(ACC,16)}')
            if s + 4 < 8:
                reads(s + 4)
            if s == 4 and not last:
                k(f'v_xor_b32 v{XA}, s34, v{XA}\nv_xor_b32 v{WA}, s34, v{WA}\ns_xor_b32 s34, s34, 0x10000')
            if s == 5 and issue:
                k(f's_add_u32 s15, s15, 1\ns_cmp_lt_u32 s15, {NC}')
    if K3:
        for c in range(4):
            body(24 - 8 * c, False, c == 3)
    else:
        k.label(f'{name}_loop')
        body(16, True, False)
        k(f's_cbranch_scc1 {name}_loop')
    k('s_waitcnt vmcnt(0)\ns_nop 10')
    for i in range(8):
        k(f'v_cvt_pk_bf16_f32 v{F+i}, v{ACC+2*i}, v{ACC+2*i+1}')
    for j in range(2):
        if K3:
            k(f'buffer_store_dwordx4 {vr(F+4*j)}, v7, s[36:39], s48 offen offset:{j*1024}')
        else:
            k(f'buffer_store_dwordx4 {vr(F+4*j)}, v6, s[36:39], s49 offen offset:{j*32}')
    tail(k)
    return k

def attention(name):
    ONES = 131072
    QF, KA, VA, VI = 4, 8, 9, 10
    KF, VF, P, S, NEG, X, Y = 16, 24, 40, 48, 80, 96, 112
    DUM = 12
    k = Kernel(name, (256, 1, 1), (512, 1, 1), lds=ONES + 12288, vgpr=128, sgpr=64)
    head(k, 256)
    k(f'''
    s_lshr_b32 s42, s41, 3
    s_lshl_b32 s7, s40, 2
    s_add_u32 s42, s42, s7
    s_and_b32 s43, s41, 7
    s_lshl_b32 s43, s43, 3
    s_add_u32 s43, s43, s3
    v_lshlrev_b32 v{KA}, 4, v1
    s_lshl_b32 s44, s42, 16
    s_lshl_b32 s7, s43, 10
    s_add_u32 s45, s44, s7
    s_lshr_b32 s7, s3, 2
    s_and_b32 s46, s3, 3
    s_lshl_b32 s46, s46, 12
    s_lshl_b32 s14, s7, 16
    s_add_u32 s14, s14, s46
    s_lshl_b32 s7, s7, 21
    s_add_u32 s12, s44, s46
    s_add_u32 s12, s12, s7
    s_add_u32 s12, s12, {WS_K}
    s_mov_b32 m0, s14
    v_mov_b32 v12, 0x3f803f80
    v_mov_b32 v13, v12
    v_mov_b32 v14, v12
    v_mov_b32 v15, v12
    v_lshlrev_b32 v2, 4, v0
    v_add_u32 v2, {ONES}, v2
    v_lshlrev_b32 v3, 3, v0
    v_add_u32 v3, {ONES+8192}, v3
    ds_write_b128 v2, v[12:15]
    ds_write_b64 v3, v[12:13]
    s_waitcnt lgkmcnt(0)
    ''')
    srd(k, 8, 32, 33, 0, 6 * MB)
    k(f'buffer_load_dwordx4 {vr(QF)}, v{KA}, s[8:11], s45 offen')
    for st in range(4):
        for i in range(4):
            k(f'buffer_load_dwordx4 v{KA}, s[8:11], s12 offen offset:{i*1024} lds')
        if st < 3:
            k(f's_add_u32 m0, s14, {(st+1)*16384}\ns_add_u32 s12, s12, 16384')
    k(f'''
    v_and_b32 v2, 15, v1
    v_lshlrev_b32 v2, 4, v2
    v_lshrrev_b32 v3, 5, v1
    v_lshl_or_b32 v2, v3, 8, v2
    v_and_b32 v3, 16, v1
    v_cmp_eq_u32 vcc, 0, v3
    v_mov_b32 v3, {ONES}
    v_mov_b32 v11, 65536
    v_cndmask_b32 v3, v3, v11, vcc
    v_add_u32 v{VA}, v2, v3
    v_mov_b32 v11, 8192
    v_cndmask_b32 v{VI}, 0, v11, vcc
    s_mov_b32 s15, 8
    s_mov_b32 s47, 0
    s_mov_b32 s49, 7
    s_mov_b32 s48, {fbits(2.0**40)}
    ''')
    for r in list(range(X, X + 16)) + list(range(P + 4, P + 8)) + list(range(VF + 12, VF + 16)):
        k(f'v_mov_b32 v{r}, 0')
    k(f'''
    s_waitcnt vmcnt(12)
    s_barrier
    ds_read_b128 {vr(KF)}, v{KA}
    ds_read_b128 {vr(KF+4)}, v{KA} offset:1024
    ds_read_b128 {vr(VF)}, v{VA}
    ds_read_b128 {vr(VF+4)}, v{VA} offset:512
    s_waitcnt lgkmcnt(3)
    {MFMA} {vr(S+16,16)}, {vr(KF)}, {vr(QF)}, 0
    s_nop 11
    ''')
    def rowmax(dst, src, first):
        if first:
            k(f'v_max3_f32 v{dst}, v{src}, v{src+1}, v{src+2}')
            rest = list(range(src + 3, src + 16))
        else:
            rest = list(range(src, src + 16))
        while len(rest) >= 2:
            k(f'v_max3_f32 v{dst}, v{dst}, v{rest[0]}, v{rest[1]}')
            rest = rest[2:]
        if rest:
            k(f'v_max_f32 v{dst}, v{dst}, v{rest[0]}')
    rowmax(2, S + 16, True)
    k(f'''
    v_mov_b32 v3, v2
    s_nop 1
    v_permlane32_swap_b32 v2, v3
    v_max_f32 v2, v2, v3
    ''')
    for r in range(16):
        k(f'v_sub_f32 v{NEG+r}, 0, v2')
    k(f'''
    s_nop 1
    {MFMA} {vr(S,16)}, {vr(KF)}, {vr(QF)}, {vr(NEG,16)}
    s_nop 11
    ''')
    def slot(t):
        s = S + 16 * (t & 1); sn = S + 16 * ((t + 1) & 1)
        cur = Y if t < 4 else X
        prev = X if t < 4 else Y
        e = lambda i: k(f'v_exp_f32 v{s+i}, v{s+i}')
        c = lambda i: k(f'v_cvt_pk_bf16_f32 v{P+i}, v{s+2*i}, v{s+2*i+1}')
        a1 = prev if t % 4 == 0 else cur
        vprev = VF + 8 * ((t + 1) & 1)
        vcur = VF + 8 * (t & 1)
        e(0); e(1)
        k(f'{MFMA} {vr(a1,16)}, {vr(vprev+4)}, {vr(P+4)}, {vr(a1,16)}')
        k(f'ds_read_b128 {vr(vprev)}, v{VA} offset:{(t+1)*1024}')
        k(f'ds_read_b128 {vr(vprev+4)}, v{VA} offset:{(t+1)*1024+512}')
        e(2); e(3); e(4); e(5)
        k('s_waitcnt lgkmcnt(2)')
        k(f'{MFMA} {vr(sn,16)}, {vr(KF+4*((t+1)&1))}, {vr(QF)}, {vr(NEG,16)}')
        k(f'ds_read_b128 {vr(KF+4*(t&1))}, v{KA} offset:{(t+2)*1024}')
        e(6); e(7)
        c(0); c(1); c(2); c(3)
        e(8); e(9)
        if t % 4 == 0:
            k(f'v_cmp_lt_f32 vcc, s48, v{prev+8}')
            k(f's_cbranch_vccnz {name}_rare{t}')
            k.label(f'{name}_cont{t}')
            k(f'{MFMA} {vr(cur,16)}, {vr(vcur)}, {vr(P)}, {vr(prev,16)}')
        else:
            k(f'{MFMA} {vr(cur,16)}, {vr(vcur)}, {vr(P)}, {vr(cur,16)}')
        if t == 7:
            k(f'v_add_u32 v{KA}, 0x2000, v{KA}\nv_add_u32 v{VA}, v{VI}, v{VA}')
        for i in range(10, 16): e(i)
        if t == 7:
            k('s_sub_u32 s15, s15, 1\ns_cmp_lg_u32 s15, 0')
        for i in range(4, 8): c(i)
    k.label(f'{name}_loop')
    k(f's_cmp_eq_u32 s15, s49\ns_cbranch_scc1 {name}_sync')
    k.label(f'{name}_slot0')
    for t in range(8):
        if t == 4:
            k.label(f'{name}_slot4')
        slot(t)
    k(f's_cbranch_scc1 {name}_loop')
    k(f'''
    s_nop 0
    {MFMA} {vr(X,16)}, {vr(VF+12)}, {vr(P+4)}, {vr(X,16)}
    s_lshl_b32 s7, s43, 5
    s_add_u32 s7, s7, s42
    s_lshl_b32 s45, s7, 10
    v_lshlrev_b32 v2, 4, v1
    s_add_u32 s45, s45, {WS_O}
    s_mov_b32 s10, {8*MB}
    s_nop 5
    v_cmp_lt_f32 vcc, s48, v{X+8}
    s_cbranch_vccnz {name}_rare8
    ''')
    k.label(f'{name}_cont8')
    k(f'v_rcp_f32 v3, v{X+8}\ns_nop 0')
    for i in range(8):
        k(f'v_mul_f32 v{X+i}, v{X+i}, v3')
    for i in range(4):
        k(f'v_cvt_pk_bf16_f32 v{P+i}, v{X+2*i}, v{X+2*i+1}')
    k('s_waitcnt vmcnt(0)')
    k(f'buffer_store_dwordx4 {vr(P)}, v2, s[8:11], s45 offen')
    k('s_endpgm')
    k.label(f'{name}_sync')
    k(f'''
    s_waitcnt vmcnt(0)
    s_barrier
    s_mov_b32 s49, -1
    v_lshlrev_b32 v2, 4, v1
    s_lshl_b32 s7, s41, 3
    s_add_u32 s7, s7, s3
    s_mul_i32 s50, s7, 7168
    s_lshl_b32 s51, s7, 11
    s_add_u32 s52, s50, 4096
    ''')
    for lo, n in ((26, 1792 * 1024), (24, 1792 * 1024)):
        srd(k, 36, lo, lo + 1, 0, n)
        for i in range(7):
            k(f'buffer_load_dwordx4 {vr(DUM)}, v2, s[36:39], s{50 if i < 4 else 52} offen offset:{(i%4)*1024}')
    srd(k, 36, 20, 21, 0, 512 * 1024)
    for i in range(2):
        k(f'buffer_load_dwordx4 {vr(DUM)}, v2, s[36:39], s51 offen offset:{i*1024}')
    k(f's_branch {name}_slot0')
    for t in (0, 4, 8):
        snap = X if t == 4 else Y
        base = 0 if t == 4 else 4
        k.label(f'{name}_rare{t}')
        k(f'''
        s_add_u32 s47, s47, 1
        s_cmp_gt_u32 s47, 64
        s_cbranch_scc1 {name}_cont{t}
        ''')
        if t != 4:
            k(f'''
            v_subrev_u32 v{KA}, 0x2000, v{KA}
            v_sub_u32 v{VA}, v{VA}, v{VI}
            s_add_u32 s15, s15, 1
            ''')
        k('s_waitcnt lgkmcnt(0)\ns_nop 11')
        for i in range(4):
            k(f'''
            ds_read_b128 {vr(KF)}, v{KA} offset:{(base+i)*1024}
            s_waitcnt lgkmcnt(0)
            {MFMA} {vr(S,16)}, {vr(KF)}, {vr(QF)}, {vr(NEG,16)}
            s_nop 11
            ''')
            rowmax(2, S, i == 0)
        k(f'''
        v_mov_b32 v3, v2
        s_nop 1
        v_permlane32_swap_b32 v2, v3
        v_max3_f32 v2, v2, v3, 0
        v_sub_f32 v3, 0, v2
        v_exp_f32 v3, v3
        ds_read_b128 {vr(KF)}, v{KA} offset:{base*1024}
        ds_read_b128 {vr(KF+4)}, v{KA} offset:{(base+1)*1024}
        ds_read_b128 {vr(VF)}, v{VA} offset:{base*1024}
        ds_read_b128 {vr(VF+4)}, v{VA} offset:{base*1024+512}
        ''')
        for r in range(16):
            k(f'v_mul_f32 v{snap+r}, v{snap+r}, v3')
            k(f'v_sub_f32 v{NEG+r}, v{NEG+r}, v2')
        for r in range(4):
            k(f'v_mov_b32 v{P+4+r}, 0')
        k(f'''
        s_waitcnt lgkmcnt(0)
        {MFMA} {vr(S,16)}, {vr(KF)}, {vr(QF)}, {vr(NEG,16)}
        s_nop 11
        s_branch {name}_slot{base}
        ''')
    tail(k)
    return k

def build(extra=()):
    ks = [ln_gemm('k1_qkv_kernel', 1), attention('k2_attn_kernel'), res_gemm('k3_wo_kernel', 3),
          ln_gemm('k4_ffn1_kernel', 4), res_gemm('k5_ffn2_kernel', 5)]
    bad = []
    for k in ks:
        bad += hazard.check(k.name, k.lines)
    for b in bad:
        print('HAZARD', b)
    return ks

if __name__ == '__main__':
    ks = build()
    hdr = '; generated by tools/gen.py: LN+QKV, attention, Wo+residual, FFN1, FFN2+residual\n'
    out = sys.argv[1] if len(sys.argv) > 1 else 'sequential_preLN__softmax_full_mha__dense_activation_relu__prompt.s'
    open(out, 'w').write(emit(ks, hdr))
```

```python
import sys
sys.path.insert(0, 'tools')
from gen import *
ks = build()
def empty(name, grid=256):
    k = Kernel(name, (grid,1,1), (64,1,1), lds=0, vgpr=4, sgpr=16)
    k('s_endpgm')
    return k
e = empty('e_kernel')
open('v_e5.s','w').write(emit(ks+[e], '', ks+[e]*5))
open('v_e5f.s','w').write(emit(ks+[e], '', [e]*5+ks))
open('v_a2.s','w').write(emit(ks, '', [ks[0], ks[1], ks[1], ks[2], ks[3], ks[4]]))
open('v_k12.s','w').write(emit(ks, '', [ks[0], ks[0], ks[1], ks[2], ks[3], ks[4]]))
open('v_k52.s','w').write(emit(ks, '', [ks[0], ks[1], ks[2], ks[3], ks[4], ks[4]]))
```

```python
import sys, struct, math
sys.path.insert(0, 'tools')
from asmlib import *
import hazard

MB = 1 << 20
WS_Q, WS_K, WS_V, WS_O, WS_H, WS_H1 = 0, 2 * MB, 4 * MB, 6 * MB, 8 * MB, 10 * MB
H1_SIZE = 2048 * 1792 * 2
E = 131072

def fbits(x):
    return '0x%08x' % struct.unpack('<I', struct.pack('<f', x))[0]

def vr(b, n=4):
    return f'v[{b}:{b+n-1}]'

MFMA = 'v_mfma_f32_32x32x16_bf16'
OPT = {}

def head(k, nwg):
    k(f'''
    s_cmp_ge_u32 s2, {nwg}
    s_cbranch_scc1 {k.name}_end
    s_load_dwordx16 s[16:31], s[0:1], 0
    s_load_dwordx2 s[32:33], s[0:1], 64
    v_lshrrev_b32 v2, 6, v0
    v_and_b32 v1, 63, v0
    v_readfirstlane_b32 s3, v2
    s_and_b32 s40, s2, 7
    s_lshr_b32 s41, s2, 3
    ''')

def tail(k):
    k.label(f'{k.name}_end')
    k('s_endpgm')

def w_addr(k, dst, tmp):
    k(f'''
    v_and_b32 v{tmp}, 44, v1
    v_lshlrev_b32 v{dst}, 5, v{tmp}
    v_and_b32 v{tmp}, 16, v1
    v_lshl_or_b32 v{dst}, v{tmp}, 1, v{dst}
    v_and_b32 v{tmp}, 2, v1
    v_lshl_or_b32 v{dst}, v{tmp}, 2, v{dst}
    v_and_b32 v{tmp}, 1, v1
    v_lshl_or_b32 v{dst}, v{tmp}, 4, v{dst}
    v_and_b32 v{tmp}, 8, v1
    v_lshl_or_b32 v{dst}, v{tmp}, 3, v{dst}
    s_lshl_b32 s7, s5, 6
    v_xor_b32 v{dst}, s7, v{dst}
    ''')

def w_lane_part(k, dst, tmp, pitch):
    k(f'''
    v_lshrrev_b32 v{tmp}, 3, v1
    v_mul_u32_u24 v{dst}, {pitch}, v{tmp}
    v_and_b32 v{tmp}, 16, v1
    v_lshrrev_b32 v{tmp}, 2, v{tmp}
    v_xor_b32 v{tmp}, v{tmp}, v1
    v_and_b32 v{tmp}, 7, v{tmp}
    v_lshl_add_u32 v{dst}, v{tmp}, 4, v{dst}
    ''')

def vo_chain(k, vo, vx, sA, sB):
    for i in range(1, 8):
        s = sB if i == 4 else sA
        if vx is None:
            k(f'v_add_u32 v{vo+i}, s{s}, v{vo+i-1}')
        else:
            k(f'v_xad_u32 v{vo+i}, v{vo+i-1}, v{vx}, s{s}')

def dma_issue(k, vo, wrap=True):
    k('s_mov_b32 m0, s14')
    k('s_add_u32 s7, s14, 32768')
    for i in range(4):
        k(f'buffer_load_dwordx4 v{vo+i}, s[8:11], s12 offen offset:{i*1024} lds')
    k('s_add_u32 m0, s14, 4096')
    k('s_and_b32 s14, s7, 0x1ffff')
    for i in range(4):
        k(f'buffer_load_dwordx4 v{vo+4+i}, s[8:11], s12 offen offset:{i*1024} lds')
    k('s_add_u32 s12, s12, s13')

def srd(k, d, lo, hi, off, nrec):
    if off:
        k(f's_add_u32 s{d}, s{lo}, {off}\ns_addc_u32 s{d+1}, s{hi}, 0')
    else:
        k(f's_mov_b32 s{d}, s{lo}\ns_mov_b32 s{d+1}, s{hi}')
    k(f's_mov_b32 s{d+2}, {nrec}\ns_mov_b32 s{d+3}, 0x00020000')

def unpack8(k, dst, src):
    for i in range(4):
        k(f'v_lshlrev_b32 v{dst+2*i}, 16, v{src+i}')
        k(f'v_and_b32 v{dst+2*i+1}, 0xffff0000, v{src+i}')

def ln_gemm(name, which):
    K1 = which == 1
    nwg = 256 if K1 else 224
    TX, TW = (1, 3) if K1 else (2, 2)
    NACC = TX * TW
    VO, XA, WA, ST, AD, F, ACC = 8, 16, 20, 22, 28, 32, 96
    k = Kernel(name, (nwg, 1, 1), (256, 1, 1), lds=E + 4096, vgpr=ACC + 16 * NACC, sgpr=64)
    head(k, nwg)
    k('''
    s_and_b32 s4, s3, 1
    s_lshr_b32 s5, s3, 1
    s_xor_b32 s6, s4, s5
    s_lshl_b32 s14, s3, 13
    s_mov_b32 s34, 0x8000
    s_mov_b32 s35, 0x3f803f80
    ''')
    k(f'''
    v_mov_b32 v2, 0
    v_mov_b32 v3, 0
    v_lshlrev_b32 v4, 3, v0
    v_add_u32 v4, {E}, v4
    ds_write_b64 v4, v[2:3]
    ''')
    w_addr(k, WA, 2)
    k(f'''
    s_lshl_b32 s7, s6, 12
    v_add_u32 v{WA}, s7, v{WA}
    v_xor_b32 v{WA+1}, 0x1000, v{WA}
    ''')
    if K1:
        k(f'''
        v_lshrrev_b32 v2, 1, v1
        v_lshrrev_b32 v3, 5, v1
        v_xor_b32 v2, v2, v3
        v_and_b32 v2, 7, v2
        v_and_b32 v3, 31, v1
        v_lshlrev_b32 v3, 7, v3
        v_lshl_or_b32 v2, v2, 4, v3
        s_lshl_b32 s7, s4, 12
        s_lshl_b32 s42, s6, 6
        s_or_b32 s7, s7, s42
        v_xor_b32 v{XA}, s7, v2
        v_xor_b32 v{XA+1}, 32, v{XA}
        v_xor_b32 v{XA+2}, 64, v{XA}
        v_xor_b32 v{XA+3}, 0x60, v{XA}
        ''')
        k(f'''
        s_cmp_eq_u32 s3, 0
        s_cbranch_scc1 {name}_rx
        ''')
        w_lane_part(k, VO, 2, 3072)
        k(f'''
        v_mov_b32 v5, 0
        s_movk_i32 s44, {24576-1024}
        s_movk_i32 s45, {24576+3072}
        s_mov_b32 s13, {64*3072}
        s_sub_u32 s12, s3, 1
        s_lshl_b32 s12, s12, 10
        s_lshl_b32 s7, s40, 7
        s_add_u32 s12, s12, s7
        s_waitcnt lgkmcnt(0)
        ''')
        srd(k, 8, 18, 19, 0, 512 * 1536 * 2)
        if OPT.get('now'): k('s_mov_b32 s10, 0')
        k(f's_branch {name}_rj')
        k.label(f'{name}_rx')
        k(f'''
        v_lshrrev_b32 v2, 3, v1
        v_lshlrev_b32 v{VO}, 10, v2
        v_lshrrev_b32 v2, 4, v1
        v_xor_b32 v2, v2, v1
        v_and_b32 v2, 7, v2
        v_lshl_add_u32 v{VO}, v2, 4, v{VO}
        v_mov_b32 v5, 64
        s_movk_i32 s44, {8192-1024}
        s_movk_i32 s45, {8192+3072}
        s_movk_i32 s13, 128
        s_lshl_b32 s12, s41, 16
        s_waitcnt lgkmcnt(0)
        ''')
        srd(k, 8, 16, 17, 0, 2048 * 512 * 2)
        if OPT.get('nox'): k('s_mov_b32 s10, 0')
        k.label(f'{name}_rj')
        vo_chain(k, VO, 5, 44, 45)
    else:
        k(f'''
        s_cmp_ge_u32 s41, 14
        s_cselect_b32 s42, 1, 0
        s_cselect_b32 s7, 14, 0
        s_sub_u32 s43, s41, s7
        s_lshl_b32 s7, s40, 1
        s_add_u32 s42, s42, s7
        v_lshlrev_b32 v2, 4, v1
        s_lshl_b32 s7, s4, 13
        s_lshl_b32 s46, s6, 11
        s_or_b32 s7, s7, s46
        v_or_b32 v{XA}, s7, v2
        v_xor_b32 v{XA+1}, 0x800, v{XA}
        s_cmp_lt_u32 s3, 2
        s_cbranch_scc1 {name}_rx
        ''')
        w_lane_part(k, VO, 2, 3584)
        k(f'''
        s_movk_i32 s44, {8*3584-1024}
        s_movk_i32 s45, {8*3584+3072}
        s_mov_b32 s13, {64*3584}
        s_sub_u32 s12, s3, 2
        s_lshl_b32 s12, s12, 7
        s_lshl_b32 s7, s43, 8
        s_add_u32 s12, s12, s7
        s_waitcnt lgkmcnt(0)
        ''')
        srd(k, 8, 24, 25, 0, 512 * 1792 * 2)
        if OPT.get('now'): k('s_mov_b32 s10, 0')
        k(f's_branch {name}_rj')
        k.label(f'{name}_rx')
        k(f'''
        v_mov_b32 v{VO}, v2
        s_movk_i32 s44, 0
        s_mov_b32 s45, 32768
        s_movk_i32 s13, 4096
        s_lshl_b32 s12, s42, 17
        s_lshl_b32 s7, s3, 16
        s_add_u32 s12, s12, s7
        s_waitcnt lgkmcnt(0)
        ''')
        srd(k, 8, 32, 33, WS_H, 2 * MB)
        if OPT.get('nox'): k('s_mov_b32 s10, 0')
        k.label(f'{name}_rj')
        vo_chain(k, VO, None, 44, 45)
    k('; @T 1')
    for c in range(3):
        dma_issue(k, VO)
    k('; @T 2')
    for r in list(range(ST, ST + 6)) + list(range(F + 32, F + 64)) + list(range(ACC, ACC + 16 * NACC)):
        k(f'v_mov_b32 v{r}, 0')
    k('s_mov_b32 s15, 0')

    FX = lambda s, j: F + 16 * s + 4 * j
    FW = lambda s, p: F + 16 * s + 4 * TX + 4 * p
    nrd = TX + 2 * TW
    WBASE = 8192 if K1 else 16384
    def reads(s):
        if OPT.get('noreads'): return
        for j in range(TX):
            if K1:
                k(f'ds_read_b128 {vr(FX(s, j))}, v{XA+s}')
            else:
                k(f'ds_read_b128 {vr(FX(s, j))}, v{XA+(s>>1)} offset:{j*4096+(s&1)*1024}')
        for p in range(TW):
            for sec in range(2):
                k(f'ds_read_b64_tr_b16 {vr(FW(s, p)+2*sec, 2)}, v{WA+(s>>1)} offset:{WBASE+p*8192+(s&1)*2048+sec*512}')
    def mfmas(s):
        if OPT.get('nomfma'): return
        for j in range(TX):
            for p in range(TW):
                a = ACC + 16 * (j * TW + p)
                if K1 and p == 2:
                    k(f'{MFMA} {vr(a,16)}, {vr(FX(s,j))}, {vr(FW(s,p))}, {vr(a,16)}')
                else:
                    k(f'{MFMA} {vr(a,16)}, {vr(FW(s,p))}, {vr(FX(s,j))}, {vr(a,16)}')
    def dots():
        if OPT.get('nodots'): return
        for s in (2, 3):
            for i in range(4):
                for j in range(TX):
                    x = FX(s, j) + i
                    k(f'v_dot2c_f32_bf16 v{ST+2*j}, s35, v{x}')
                    k(f'v_dot2c_f32_bf16 v{ST+2*j+1}, v{x}, v{x}')
                for p in range(TW):
                    k(f'v_dot2c_f32_bf16 v{ST+2*TX+p}, s35, v{FW(s,p)+i}')
    k('; @T 3')
    k.label(f'{name}_loop')
    k('s_waitcnt vmcnt(16)\ns_barrier')
    reads(0); reads(1)
    k('s_cmp_lt_u32 s15, 5\ns_cselect_b32 s10, s10, 0')
    dma_issue(k, VO)
    dots()
    reads(2)
    k(f's_waitcnt lgkmcnt({2*nrd})')
    mfmas(0)
    reads(3)
    k(f's_waitcnt lgkmcnt({2*nrd})')
    mfmas(1)
    nxa = 4 if K1 else 2
    for r in list(range(XA, XA + nxa)) + [WA, WA + 1]:
        k(f'v_xor_b32 v{r}, s34, v{r}')
    k('s_xor_b32 s34, s34, 0x10000')
    k(f's_waitcnt lgkmcnt({nrd})')
    mfmas(2)
    k('s_add_u32 s15, s15, 1\ns_cmp_lt_u32 s15, 8')
    k('s_waitcnt lgkmcnt(0)')
    mfmas(3)
    k(f's_cbranch_scc1 {name}_loop')
    k('; @T 4')
    dots()
    k(f'''
    s_waitcnt vmcnt(0)
    ; @T 5
    v_lshlrev_b32 v2, 2, v1
    v_and_b32 v3, 31, v1
    v_lshlrev_b32 v3, 2, v3
    v_lshrrev_b32 v4, 5, v1
    v_lshlrev_b32 v4, 4, v4
    ''')
    for p in range(3):
        k(f'v_permlane32_swap_b32 v{ST+2*p}, v{ST+2*p+1}')
    if K1:
        k(f'''
        s_lshl_b32 s7, s4, 8
        s_add_u32 s46, s7, {E}
        s_lshl_b32 s7, s5, 9
        s_add_u32 s47, s7, {E+512}
        v_add_f32 v{ST}, v{ST}, v{ST+1}
        v_add_f32 v{ST+2}, v{ST+2}, v{ST+3}
        v_add_f32 v{ST+4}, v{ST+4}, v{ST+5}
        v_add_u32 v5, s46, v2
        v_add_u32 v6, s47, v2
        ds_add_f32 v5, v{ST}
        ds_add_f32 v6, v{ST+2}
        ds_add_f32 v6, v{ST+4} offset:256
        v_add_u32 v5, s46, v3
        v_add_u32 v6, s47, v4
        v_add_u32 v7, s47, v3
        s_waitcnt lgkmcnt(0)
        s_barrier
        ; @T 6
        ds_read2_b32 v[{ST}:{ST+1}], v5 offset1:32
        ds_read_b32 v{ST+2}, v7 offset:256
        ''')
        for t in range(2):
            for q in range(4):
                k(f'ds_read_b128 {vr(F+16*t+4*q)}, v6 offset:{t*128+q*32}')
        srd(k, 36, 32, 33, 0, 6 * MB)
        k(f'''
        s_lshl_b32 s7, s40, 2
        s_lshl_b32 s48, s5, 1
        s_add_u32 s7, s7, s48
        s_lshl_b32 s7, s7, 6
        s_lshl_b32 s48, s41, 1
        s_add_u32 s48, s48, s4
        s_add_u32 s7, s7, s48
        s_lshl_b32 s48, s7, 10
        s_add_u32 s49, s48, 0x10000
        s_add_u32 s50, s48, {WS_K}
        s_add_u32 s51, s48, {WS_K+0x10000}
        s_add_u32 s52, s48, {WS_V}
        s_lshl_b32 s53, s3, 8
        s_add_u32 s53, s53, {E+2048}
        v_lshlrev_b32 v8, 4, v1
        v_and_b32 v9, 16, v1
        v_lshlrev_b32 v9, 12, v9
        v_and_b32 v10, 15, v1
        v_lshl_or_b32 v9, v10, 4, v9
        v_lshl_or_b32 v9, v4, 4, v9
        v_add_u32 v10, s53, v2
        v_add_u32 v11, s53, v4
        v_cmp_gt_u32 vcc, 32, v1
        s_waitcnt lgkmcnt(9)
        v_mul_f32 v{ST}, {fbits(-1.0/512)}, v{ST}
        v_mul_f32 v{ST+1}, {fbits(1.0/512)}, v{ST+1}
        v_fma_f32 v{ST+1}, -v{ST}, v{ST}, v{ST+1}
        v_max_f32 v{ST+1}, 0, v{ST+1}
        v_add_f32 v{ST+1}, {fbits(1e-5)}, v{ST+1}
        v_rsq_f32 v{ST+4}, v{ST+1}
        s_nop 0
        v_cndmask_b32 v12, v{ST}, v{ST+4}, vcc
        ds_write_b32 v10, v12
        v_mul_f32 v14, {fbits(0.25*math.log2(math.e))}, v{ST+4}
        s_waitcnt lgkmcnt(0)
        ''')
        for q in range(8):
            k(f'ds_read_b128 {vr(F+32+4*q)}, v11 offset:{q*32}')
        for t, sc, so in ((0, 14, (48, 49)), (1, ST + 4, (50, 51))):
            a = ACC + 16 * t; c = F + 16 * t
            for i in range(8):
                k(f'v_pk_fma_f32 {vr(a+2*i,2)}, {vr(c+2*i,2)}, {vr(ST,2)}, {vr(a+2*i,2)} op_sel_hi:[1,0,1]')
            for i in range(8):
                k(f'v_pk_mul_f32 {vr(a+2*i,2)}, {vr(a+2*i,2)}, {vr(sc,2)} op_sel_hi:[1,0]')
            for i in range(8):
                k(f'v_cvt_pk_bf16_f32 v{c+i}, v{a+2*i}, v{a+2*i+1}')
            for j in range(2):
                k(f'buffer_store_dwordx4 {vr(c+4*j)}, v8, s[36:39], s{so[j]} offen')
        a = ACC + 32
        k('s_waitcnt lgkmcnt(0)')
        for i in range(8):
            k(f'v_pk_fma_f32 {vr(a+2*i,2)}, {vr(F+48+2*i,2)}, {vr(ST+2,2)}, {vr(a+2*i,2)} op_sel_hi:[1,0,1]')
        for i in range(8):
            k(f'v_pk_mul_f32 {vr(a+2*i,2)}, {vr(a+2*i,2)}, {vr(F+32+2*i,2)}')
        for i in range(8):
            k(f'v_cvt_pk_bf16_f32 v{F+48+i}, v{a+2*i}, v{a+2*i+1}')
        for j in range(2):
            k(f'buffer_store_dwordx4 {vr(F+48+4*j)}, v9, s[36:39], s52 offen offset:{j*512}')
    else:
        k(f'''
        s_lshl_b32 s7, s4, 9
        s_add_u32 s46, s7, {E}
        s_lshl_b32 s7, s5, 8
        s_add_u32 s47, s7, {E+1024}
        v_add_f32 v{ST}, v{ST}, v{ST+1}
        v_add_f32 v{ST+2}, v{ST+2}, v{ST+3}
        v_add_f32 v{ST+4}, v{ST+4}, v{ST+5}
        v_add_u32 v5, s46, v2
        v_add_u32 v6, s47, v2
        ds_add_f32 v5, v{ST}
        ds_add_f32 v5, v{ST+2} offset:256
        ds_add_f32 v6, v{ST+4}
        v_add_u32 v5, s46, v3
        v_add_u32 v6, s47, v4
        s_waitcnt lgkmcnt(0)
        s_barrier
        ; @T 6
        ds_read2_b32 v[{ST}:{ST+1}], v5 offset1:32
        ds_read2_b32 v[{ST+2}:{ST+3}], v5 offset0:64 offset1:96
        ''')
        for t in range(2):
            for q in range(4):
                k(f'ds_read_b128 {vr(F+16*t+4*q)}, v6 offset:{t*128+q*32}')
        srd(k, 36, 32, 33, WS_H1, H1_SIZE)
        k(f'''
        s_lshl_b32 s7, s42, 2
        s_lshl_b32 s48, s4, 1
        s_add_u32 s7, s7, s48
        s_mul_i32 s7, s7, 112
        s_lshl_b32 s48, s43, 3
        s_add_u32 s7, s7, s48
        s_lshl_b32 s48, s5, 1
        s_add_u32 s7, s7, s48
        s_lshl_b32 s48, s7, 10
        s_add_u32 s49, s48, 4096
        s_add_u32 s50, s48, {112*1024}
        s_add_u32 s51, s48, {112*1024+4096}
        v_lshlrev_b32 v8, 4, v1
        s_waitcnt lgkmcnt(8)
        ''')
        for j in range(2):
            m = ST + 2 * j; r = 10 + 2 * j
            k(f'''
            v_mul_f32 v{m}, {fbits(-1.0/512)}, v{m}
            v_mul_f32 v{m+1}, {fbits(1.0/512)}, v{m+1}
            v_fma_f32 v{m+1}, -v{m}, v{m}, v{m+1}
            v_max_f32 v{m+1}, 0, v{m+1}
            v_add_f32 v{m+1}, {fbits(1e-5)}, v{m+1}
            v_rsq_f32 v{r}, v{m+1}
            ''')
        k('s_waitcnt lgkmcnt(0)')
        for j in range(2):
            for p in range(2):
                a = ACC + 16 * (j * 2 + p); c = F + 16 * p; o = F + 32 + 8 * (j * 2 + p)
                for i in range(8):
                    k(f'v_pk_fma_f32 {vr(a+2*i,2)}, {vr(c+2*i,2)}, {vr(ST+2*j,2)}, {vr(a+2*i,2)} op_sel_hi:[1,0,1]')
                for i in range(8):
                    k(f'v_pk_mul_f32 {vr(a+2*i,2)}, {vr(a+2*i,2)}, {vr(10+2*j,2)} op_sel_hi:[1,0]')
                for i in range(8):
                    k(f'v_cvt_pk_bf16_f32 v{o+i}, v{a+2*i}, v{a+2*i+1}')
                for i in range(8):
                    k(f'v_pk_max_i16 v{o+i}, v{o+i}, 0')
                for jj in range(2):
                    k(f'buffer_store_dwordx4 {vr(o+4*jj)}, v8, s[36:39], s{48+2*j+p} offen offset:{jj*1024}')
    k('; @T 7')
    tail(k)
    return k

def res_gemm(name, which):
    K3 = which == 3
    VO, XA, WA, RS, F, ACC = 8, 16, 17, 20, 32, 96
    NC = 4 if K3 else 14
    k = Kernel(name, (256, 1, 1), (256, 1, 1), lds=E, vgpr=ACC + 16, sgpr=64)
    head(k, 256)
    k('''
    s_and_b32 s4, s3, 1
    s_lshr_b32 s5, s3, 1
    s_lshl_b32 s14, s3, 13
    s_mov_b32 s34, 0x8000
    s_lshr_b32 s42, s41, 3
    s_lshl_b32 s7, s40, 2
    s_add_u32 s42, s42, s7
    s_and_b32 s43, s41, 7
    ''')
    w_addr(k, WA, 2)
    k(f'''
    v_lshlrev_b32 v7, 4, v1
    s_lshl_b32 s7, s4, 13
    v_or_b32 v{XA}, s7, v7
    v_and_b32 v2, 31, v1
    v_lshlrev_b32 v6, 10, v2
    v_lshrrev_b32 v2, 5, v1
    v_lshl_or_b32 v6, v2, 4, v6
    s_lshl_b32 s46, s42, 1
    s_add_u32 s46, s46, s4
    s_lshl_b32 s47, s43, 1
    s_add_u32 s47, s47, s5
    s_lshl_b32 s48, s46, 15
    s_lshl_b32 s7, s47, 6
    s_add_u32 s49, s48, s7
    s_lshl_b32 s7, s47, 11
    s_add_u32 s48, s48, s7
    s_cmp_lt_u32 s3, 2
    s_cbranch_scc1 {name}_rx
    ''')
    w_lane_part(k, VO, 2, 1024)
    k(f'''
    s_movk_i32 s44, {8192-1024}
    s_movk_i32 s45, {8192+3072}
    s_mov_b32 s13, {128*1024}
    s_sub_u32 s12, s3, 2
    s_lshl_b32 s12, s12, 16
    s_lshl_b32 s7, s43, 7
    s_add_u32 s12, s12, s7
    s_waitcnt lgkmcnt(0)
    ''')
    if K3:
        srd(k, 8, 20, 21, 0, 512 * 512 * 2)
    else:
        srd(k, 8, 26, 27, 0, 1792 * 512 * 2)
    if OPT.get('now'): k('s_mov_b32 s10, 0')
    k(f's_branch {name}_rj')
    k.label(f'{name}_rx')
    k(f'''
    v_mov_b32 v{VO}, v7
    s_movk_i32 s44, 0
    s_movk_i32 s45, 4096
    s_movk_i32 s13, 8192
    s_lshl_b32 s12, s42, 1
    s_add_u32 s12, s12, s3
    s_mul_i32 s12, s12, {32768 if K3 else 112*1024}
    s_waitcnt lgkmcnt(0)
    ''')
    if K3:
        srd(k, 8, 32, 33, WS_O, 2 * MB)
    else:
        srd(k, 8, 32, 33, WS_H1, H1_SIZE)
    if OPT.get('nox'): k('s_mov_b32 s10, 0')
    k.label(f'{name}_rj')
    vo_chain(k, VO, None, 44, 45)
    if K3:
        srd(k, 36, 16, 17, 0, 2 * MB)
        for j in range(2):
            k(f'buffer_load_dwordx4 {vr(RS+4*j)}, v6, s[36:39], s49 offen offset:{j*32}')
    else:
        srd(k, 36, 32, 33, WS_H, 2 * MB)
        for j in range(2):
            k(f'buffer_load_dwordx4 {vr(RS+4*j)}, v7, s[36:39], s48 offen offset:{j*1024}')
    npro = 4 if K3 else 3
    k('; @T 1')
    for c in range(npro):
        dma_issue(k, VO)
    k('; @T 2')
    if K3:
        srd(k, 36, 32, 33, WS_H, 2 * MB)
    else:
        srd(k, 36, 28, 29, 0, 2 * MB)
    k(f's_waitcnt vmcnt({8*npro})')
    unpack8(k, ACC, RS)
    unpack8(k, ACC + 8, RS + 4)
    k('s_mov_b32 s15, 0')
    k('; @T 3')
    def reads(s):
        if OPT.get('noreads'): return
        k(f'ds_read_b128 {vr(F+8*s)}, v{XA} offset:{s*1024}')
        for sec in range(2):
            k(f'ds_read_b64_tr_b16 {vr(F+8*s+4+2*sec, 2)}, v{WA} offset:{16384+s*2048+sec*512}')
    def body(vm, issue, last):
        k(f's_waitcnt vmcnt({vm})\ns_barrier')
        for s in range(4):
            reads(s)
        if issue:
            k(f's_cmp_lt_u32 s15, {NC-3}\ns_cselect_b32 s10, s10, 0')
            dma_issue(k, VO)
        for s in range(8):
            left = min(8, s + 4) - s - 1
            k(f's_waitcnt lgkmcnt({3*left})')
            if not OPT.get('nomfma'): k(f'{MFMA} {vr(ACC,16)}, {vr(F+8*s+4)}, {vr(F+8*s)}, {vr(ACC,16)}')
            if s + 4 < 8:
                reads(s + 4)
            if s == 4 and not last:
                k(f'v_xor_b32 v{XA}, s34, v{XA}\nv_xor_b32 v{WA}, s34, v{WA}\ns_xor_b32 s34, s34, 0x10000')
            if s == 5 and issue:
                k(f's_add_u32 s15, s15, 1\ns_cmp_lt_u32 s15, {NC}')
    if K3:
        for c in range(4):
            body(24 - 8 * c, False, c == 3)
    else:
        k.label(f'{name}_loop')
        body(16, True, False)
        k(f's_cbranch_scc1 {name}_loop')
    k('; @T 4')
    k('s_waitcnt vmcnt(0)\ns_nop 10')
    k('; @T 5')
    for i in range(8):
        k(f'v_cvt_pk_bf16_f32 v{F+i}, v{ACC+2*i}, v{ACC+2*i+1}')
    for j in range(2):
        if K3:
            k(f'buffer_store_dwordx4 {vr(F+4*j)}, v7, s[36:39], s48 offen offset:{j*1024}')
        else:
            k(f'buffer_store_dwordx4 {vr(F+4*j)}, v6, s[36:39], s49 offen offset:{j*32}')
    k('; @T 7')
    tail(k)
    return k

def attention(name):
    ONES = 131072
    QF, KA, VA, VI = 4, 8, 9, 10
    KF, VF, P, S, NEG, X, Y = 16, 24, 40, 48, 80, 96, 112
    DUM = 12
    k = Kernel(name, (256, 1, 1), (512, 1, 1), lds=ONES + 12288, vgpr=128, sgpr=64)
    head(k, 256)
    k(f'''
    s_lshr_b32 s42, s41, 3
    s_lshl_b32 s7, s40, 2
    s_add_u32 s42, s42, s7
    s_and_b32 s43, s41, 7
    s_lshl_b32 s43, s43, 3
    s_add_u32 s43, s43, s3
    v_lshlrev_b32 v{KA}, 4, v1
    s_lshl_b32 s44, s42, 16
    s_lshl_b32 s7, s43, 10
    s_add_u32 s45, s44, s7
    s_lshr_b32 s7, s3, 2
    s_and_b32 s46, s3, 3
    s_lshl_b32 s46, s46, 12
    s_lshl_b32 s14, s7, 16
    s_add_u32 s14, s14, s46
    s_lshl_b32 s7, s7, 21
    s_add_u32 s12, s44, s46
    s_add_u32 s12, s12, s7
    s_add_u32 s12, s12, {WS_K}
    s_mov_b32 m0, s14
    v_mov_b32 v12, 0x3f803f80
    v_mov_b32 v13, v12
    v_mov_b32 v14, v12
    v_mov_b32 v15, v12
    v_lshlrev_b32 v2, 4, v0
    v_add_u32 v2, {ONES}, v2
    v_lshlrev_b32 v3, 3, v0
    v_add_u32 v3, {ONES+8192}, v3
    ds_write_b128 v2, v[12:15]
    ds_write_b64 v3, v[12:13]
    s_waitcnt lgkmcnt(0)
    ''')
    srd(k, 8, 32, 33, 0, 6 * MB)
    k(f'buffer_load_dwordx4 {vr(QF)}, v{KA}, s[8:11], s45 offen')
    for st in range(4):
        for i in range(4):
            k(f'buffer_load_dwordx4 v{KA}, s[8:11], s12 offen offset:{i*1024} lds')
        if st < 3:
            k(f's_add_u32 m0, s14, {(st+1)*16384}\ns_add_u32 s12, s12, 16384')
    k(f'''
    v_and_b32 v2, 15, v1
    v_lshlrev_b32 v2, 4, v2
    v_lshrrev_b32 v3, 5, v1
    v_lshl_or_b32 v2, v3, 8, v2
    v_and_b32 v3, 16, v1
    v_cmp_eq_u32 vcc, 0, v3
    v_mov_b32 v3, {ONES}
    v_mov_b32 v11, 65536
    v_cndmask_b32 v3, v3, v11, vcc
    v_add_u32 v{VA}, v2, v3
    v_mov_b32 v11, 8192
    v_cndmask_b32 v{VI}, 0, v11, vcc
    s_mov_b32 s15, 8
    s_mov_b32 s47, 0
    s_mov_b32 s49, 7
    s_mov_b32 s48, {fbits(2.0**40)}
    ''')
    for r in list(range(X, X + 16)) + list(range(P + 4, P + 8)) + list(range(VF + 12, VF + 16)):
        k(f'v_mov_b32 v{r}, 0')
    k(f'''
    ; @T 1
    s_waitcnt vmcnt(12)
    s_barrier
    ; @T 2
    ds_read_b128 {vr(KF)}, v{KA}
    ds_read_b128 {vr(KF+4)}, v{KA} offset:1024
    ds_read_b128 {vr(VF)}, v{VA}
    ds_read_b128 {vr(VF+4)}, v{VA} offset:512
    s_waitcnt lgkmcnt(3)
    {MFMA} {vr(S+16,16)}, {vr(KF)}, {vr(QF)}, 0
    s_nop 11
    ''')
    def rowmax(dst, src, first):
        if first:
            k(f'v_max3_f32 v{dst}, v{src}, v{src+1}, v{src+2}')
            rest = list(range(src + 3, src + 16))
        else:
            rest = list(range(src, src + 16))
        while len(rest) >= 2:
            k(f'v_max3_f32 v{dst}, v{dst}, v{rest[0]}, v{rest[1]}')
            rest = rest[2:]
        if rest:
            k(f'v_max_f32 v{dst}, v{dst}, v{rest[0]}')
    rowmax(2, S + 16, True)
    k(f'''
    v_mov_b32 v3, v2
    s_nop 1
    v_permlane32_swap_b32 v2, v3
    v_max_f32 v2, v2, v3
    ''')
    for r in range(16):
        k(f'v_sub_f32 v{NEG+r}, 0, v2')
    k(f'''
    s_nop 1
    {MFMA} {vr(S,16)}, {vr(KF)}, {vr(QF)}, {vr(NEG,16)}
    s_nop 11
    ''')
    def slot(t):
        s = S + 16 * (t & 1); sn = S + 16 * ((t + 1) & 1)
        cur = Y if t < 4 else X
        prev = X if t < 4 else Y
        e = lambda i: k(f'v_exp_f32 v{s+i}, v{s+i}')
        c = lambda i: k(f'v_cvt_pk_bf16_f32 v{P+i}, v{s+2*i}, v{s+2*i+1}')
        a1 = prev if t % 4 == 0 else cur
        vprev = VF + 8 * ((t + 1) & 1)
        vcur = VF + 8 * (t & 1)
        e(0); e(1)
        k(f'{MFMA} {vr(a1,16)}, {vr(vprev+4)}, {vr(P+4)}, {vr(a1,16)}')
        k(f'ds_read_b128 {vr(vprev)}, v{VA} offset:{(t+1)*1024}')
        k(f'ds_read_b128 {vr(vprev+4)}, v{VA} offset:{(t+1)*1024+512}')
        e(2); e(3); e(4); e(5)
        k('s_waitcnt lgkmcnt(2)')
        k(f'{MFMA} {vr(sn,16)}, {vr(KF+4*((t+1)&1))}, {vr(QF)}, {vr(NEG,16)}')
        k(f'ds_read_b128 {vr(KF+4*(t&1))}, v{KA} offset:{(t+2)*1024}')
        e(6); e(7)
        c(0); c(1); c(2); c(3)
        e(8); e(9)
        if t % 4 == 0:
            k(f'v_cmp_lt_f32 vcc, s48, v{prev+8}')
            k(f's_cbranch_vccnz {name}_rare{t}')
            k.label(f'{name}_cont{t}')
            k(f'{MFMA} {vr(cur,16)}, {vr(vcur)}, {vr(P)}, {vr(prev,16)}')
        else:
            k(f'{MFMA} {vr(cur,16)}, {vr(vcur)}, {vr(P)}, {vr(cur,16)}')
        if t == 7:
            k(f'v_add_u32 v{KA}, 0x2000, v{KA}\nv_add_u32 v{VA}, v{VI}, v{VA}')
        for i in range(10, 16): e(i)
        if t == 7:
            k('s_sub_u32 s15, s15, 1\ns_cmp_lg_u32 s15, 0')
        for i in range(4, 8): c(i)
    k('; @T 3')
    k.label(f'{name}_loop')
    k(f's_cmp_eq_u32 s15, s49\ns_cbranch_scc1 {name}_sync')
    k.label(f'{name}_slot0')
    for t in range(8):
        if t == 4:
            k.label(f'{name}_slot4')
        slot(t)
    k(f's_cbranch_scc1 {name}_loop')
    k('; @T 6')
    k(f'''
    s_nop 0
    {MFMA} {vr(X,16)}, {vr(VF+12)}, {vr(P+4)}, {vr(X,16)}
    s_lshl_b32 s7, s43, 5
    s_add_u32 s7, s7, s42
    s_lshl_b32 s45, s7, 10
    v_lshlrev_b32 v2, 4, v1
    s_add_u32 s45, s45, {WS_O}
    s_mov_b32 s10, {8*MB}
    s_nop 5
    v_cmp_lt_f32 vcc, s48, v{X+8}
    s_cbranch_vccnz {name}_rare8
    ''')
    k.label(f'{name}_cont8')
    k(f'v_rcp_f32 v3, v{X+8}\ns_nop 0')
    for i in range(8):
        k(f'v_mul_f32 v{X+i}, v{X+i}, v3')
    for i in range(4):
        k(f'v_cvt_pk_bf16_f32 v{P+i}, v{X+2*i}, v{X+2*i+1}')
    k('s_waitcnt vmcnt(0)')
    k(f'buffer_store_dwordx4 {vr(P)}, v2, s[8:11], s45 offen')
    k('s_endpgm')
    k.label(f'{name}_sync')
    k(f'''
    ; @T 4
    s_waitcnt vmcnt(0)
    s_barrier
    ; @T 5
    s_mov_b32 s49, -1
    v_lshlrev_b32 v2, 4, v1
    s_lshl_b32 s7, s41, 3
    s_add_u32 s7, s7, s3
    s_mul_i32 s50, s7, 7168
    s_lshl_b32 s51, s7, 11
    s_add_u32 s52, s50, 4096
    ''')
    for lo, n in ((26, 1792 * 1024), (24, 1792 * 1024)):
        srd(k, 36, lo, lo + 1, 0, n)
        for i in range(7):
            k(f'buffer_load_dwordx4 {vr(DUM)}, v2, s[36:39], s{50 if i < 4 else 52} offen offset:{(i%4)*1024}')
    srd(k, 36, 20, 21, 0, 512 * 1024)
    for i in range(2):
        k(f'buffer_load_dwordx4 {vr(DUM)}, v2, s[36:39], s51 offen offset:{i*1024}')
    k(f's_branch {name}_slot0')
    for t in (0, 4, 8):
        snap = X if t == 4 else Y
        base = 0 if t == 4 else 4
        k.label(f'{name}_rare{t}')
        k(f'''
        s_add_u32 s47, s47, 1
        s_cmp_gt_u32 s47, 64
        s_cbranch_scc1 {name}_cont{t}
        ''')
        if t != 4:
            k(f'''
            v_subrev_u32 v{KA}, 0x2000, v{KA}
            v_sub_u32 v{VA}, v{VA}, v{VI}
            s_add_u32 s15, s15, 1
            ''')
        k('s_waitcnt lgkmcnt(0)\ns_nop 11')
        for i in range(4):
            k(f'''
            ds_read_b128 {vr(KF)}, v{KA} offset:{(base+i)*1024}
            s_waitcnt lgkmcnt(0)
            {MFMA} {vr(S,16)}, {vr(KF)}, {vr(QF)}, {vr(NEG,16)}
            s_nop 11
            ''')
            rowmax(2, S, i == 0)
        k(f'''
        v_mov_b32 v3, v2
        s_nop 1
        v_permlane32_swap_b32 v2, v3
        v_max3_f32 v2, v2, v3, 0
        v_sub_f32 v3, 0, v2
        v_exp_f32 v3, v3
        ds_read_b128 {vr(KF)}, v{KA} offset:{base*1024}
        ds_read_b128 {vr(KF+4)}, v{KA} offset:{(base+1)*1024}
        ds_read_b128 {vr(VF)}, v{VA} offset:{base*1024}
        ds_read_b128 {vr(VF+4)}, v{VA} offset:{base*1024+512}
        ''')
        for r in range(16):
            k(f'v_mul_f32 v{snap+r}, v{snap+r}, v3')
            k(f'v_sub_f32 v{NEG+r}, v{NEG+r}, v2')
        for r in range(4):
            k(f'v_mov_b32 v{P+4+r}, 0')
        k(f'''
        s_waitcnt lgkmcnt(0)
        {MFMA} {vr(S,16)}, {vr(KF)}, {vr(QF)}, {vr(NEG,16)}
        s_nop 11
        s_branch {name}_slot{base}
        ''')
    tail(k)
    return k

def build(extra=()):
    ks = [ln_gemm('k1_qkv_kernel', 1), attention('k2_attn_kernel'), res_gemm('k3_wo_kernel', 3),
          ln_gemm('k4_ffn1_kernel', 4), res_gemm('k5_ffn2_kernel', 5)]
    bad = []
    for k in ks:
        bad += hazard.check(k.name, k.lines)
    for b in bad:
        print('HAZARD', b)
    return ks

if __name__ == '__main__':
    ks = build()
    hdr = '; generated by tools/gen.py: LN+QKV, attention, Wo+residual, FFN1, FFN2+residual\n'
    out = sys.argv[1] if len(sys.argv) > 1 else 'sequential_preLN__softmax_full_mha__dense_activation_relu__prompt.s'
    open(out, 'w').write(emit(ks, hdr))
```

```python
import sys, re
sys.path.insert(0, 'tools')
import gen
from asmlib import *

def instrument(ks):
    for idx, k in enumerate(ks):
        nw = k.block[0] // 64
        new = []
        done_head = False
        for l in k.lines:
            t = l.strip()
            if not done_head and t.startswith('s_load_dwordx16'):
                new.append('    s_memrealtime s[70:71]')
                new.append('    s_memtime s[72:73]')
                for n in range(1, 9):
                    new.append(f'    s_mov_b32 s{78+2*n}, 0')
                done_head = True
            m = re.match(r'; @T (\d+)', t)
            if m:
                n = int(m.group(1))
                new.append(f'    s_memtime s[{78+2*n}:{79+2*n}]')
                continue
            if t == 's_endpgm' and new[-1].strip() != f'{k.name}_end:':
                new += stamp(k, idx, nw)
            if t == f'{k.name}_end:' and not new[-1].strip().startswith('s_branch') and not new[-1].strip() == 's_endpgm':
                new += stamp(k, idx, nw)
            new.append(l)
        k.lines = new
        k.sgpr = 100
    return ks

def stamp(k, idx, nw):
    o = f'''s_waitcnt vmcnt(0)
s_memrealtime s[74:75]
s_memtime s[76:77]
s_mul_i32 s78, s2, {nw}
s_add_u32 s78, s78, s3
s_mul_i32 s78, s78, 48
s_add_u32 s78, s78, {(32<<20) + idx*131072}
s_waitcnt lgkmcnt(0)
s_sub_u32 s76, s76, s72
v_mov_b32 v4, s70
v_mov_b32 v5, s74
v_mov_b32 v6, s76
v_mov_b32 v7, s72
v_mov_b32 v2, s78
global_store_dwordx4 v2, v[4:7], s[32:33]
s_nop 1'''.split('\n')
    for q in range(2):
        for i in range(4):
            o.append(f'v_mov_b32 v{8+4*q+i}, s{80+8*q+2*i}')
        o.append(f'global_store_dwordx4 v2, v[{8+4*q}:{11+4*q}], s[32:33] offset:{16+16*q}')
    return ['    ' + x for x in o]

if __name__ == '__main__':
    for o in sys.argv[2:]:
        kv = o.split('=')
        gen.OPT[kv[0]] = int(kv[1]) if len(kv) > 1 else 1
    ks = instrument(gen.build())
    order = gen.OPT.get('order')
    la = [ks[int(c) - 1] for c in str(order)] if order else ks
    open(sys.argv[1] if len(sys.argv) > 1 else 'instr.s', 'w').write(emit(ks, '', la))
```

```python
import re

TRANS = ('v_exp_f32', 'v_log_f32', 'v_rcp_f32', 'v_rsq_f32', 'v_sqrt_f32', 'v_sin_f32', 'v_cos_f32')

def regs_of(tok):
    tok = tok.strip()
    tok = tok.lstrip('-').strip('|')
    m = re.fullmatch(r'([vsa])\[(\d+):(\d+)\]', tok)
    if m:
        return [(m.group(1), i) for i in range(int(m.group(2)), int(m.group(3)) + 1)]
    m = re.fullmatch(r'([vsa])(\d+)', tok)
    if m:
        return [(m.group(1), int(m.group(2)))]
    if tok in ('vcc', 'vcc_lo', 'vcc_hi'):
        return [('s', 'vcc')]
    if tok in ('exec', 'exec_lo', 'exec_hi'):
        return [('s', 'exec')]
    if tok == 'm0':
        return [('s', 'm0')]
    return []

class Ins:
    def __init__(self, line):
        self.line = line
        t = line.split(';')[0].strip()
        parts = t.split(None, 1)
        self.op = parts[0]
        rest = parts[1] if len(parts) > 1 else ''
        ops = [o.strip() for o in rest.split(',')] if rest else []
        clean = []
        self.mods = ''
        for o in ops:
            p = o.split(None, 1)
            clean.append(p[0] if p else '')
            if len(p) > 1:
                self.mods += ' ' + p[1]
        self.ops = clean
        op = self.op
        self.is_mfma = op.startswith('v_mfma')
        self.is_valu = op.startswith('v_') and not self.is_mfma
        self.is_dot = op.startswith('v_dot')
        self.is_trans = any(op.startswith(x) for x in TRANS)
        self.is_ds = op.startswith('ds_')
        self.is_vmem = op.startswith('buffer_') or op.startswith('global_')
        self.is_salu = op.startswith('s_')
        self.ws = 1
        if op == 's_nop':
            self.ws = int(clean[0]) + 1
        self.dst = []; self.src = []
        R = [regs_of(o) for o in clean]
        if self.is_mfma:
            self.dst = R[0]; self.A = R[1]; self.B = R[2]; self.C = R[3]
            self.src = R[1] + R[2] + R[3]
            self.passes = 8 if '32x32' in op else 4
        elif self.is_valu:
            if op.startswith('v_cmp'):
                self.dst = R[0]; self.src = sum(R[1:], [])
                if op.startswith('v_cmpx'):
                    self.dst = self.dst + [('s', 'exec')]
            elif op.startswith('v_permlane32_swap') or op.startswith('v_permlane16_swap') or op.startswith('v_swap'):
                self.dst = R[0] + R[1]; self.src = R[0] + R[1]
            elif op.startswith('v_add_co') or op.startswith('v_sub_co') or op.startswith('v_addc_co'):
                self.dst = R[0] + R[1]; self.src = sum(R[2:], [])
            elif op in ('v_nop',):
                pass
            else:
                self.dst = R[0]; self.src = sum(R[1:], [])
                if op.startswith('v_dot2c') or op.startswith('v_fmac') or op.startswith('v_mac'):
                    self.src = self.src + R[0]
                if op.startswith('v_cndmask') and len(clean) == 3:
                    self.src = self.src + [('s', 'vcc')]
        elif self.is_ds:
            if op.startswith('ds_read'):
                self.dst = R[0]; self.src = sum(R[1:], [])
            else:
                self.src = sum(R, [])
        elif self.is_vmem:
            self.lds = bool(re.search(r'\blds\b', self.mods + ' ' + ' '.join(ops)))
            if 'load' in op and not self.lds:
                self.dst = R[0]; self.src = sum(R[1:], [])
            else:
                self.src = sum(R, [])
                self.data = R[0] if op.startswith('buffer_') else (R[1] if len(R) > 1 else [])
            if self.lds:
                self.src = self.src + [('s', 'm0')]
        elif self.is_salu:
            if op.startswith('s_cmp') or op.startswith('s_cbranch') or op in ('s_branch', 's_waitcnt', 's_barrier', 's_nop', 's_endpgm', 's_setprio', 's_sleep'):
                self.src = sum(R, [])
            else:
                self.dst = R[0] if R else []
                self.src = sum(R[1:], [])

def ov(a, b):
    return bool(set(a) & set(b))

def need(p, c):
    n = 0
    vd = [r for r in p.dst if r[0] in 'va']
    sd = [r for r in p.dst if r[0] == 's']
    if p.is_valu:
        if c.is_mfma and ov(vd, c.src): n = max(n, 2)
        if c.is_mfma and ('s', 'exec') in sd: n = max(n, 4)
        if c.is_valu:
            if p.is_trans and not c.is_trans and ov(vd, c.src): n = max(n, 1)
            if p.is_trans and c.is_trans and ov(vd, c.src): n = max(n, 1)
            if (c.op.startswith('v_readlane') or c.op.startswith('v_readfirstlane')) and ov(vd, c.src): n = max(n, 1)
            if c.op.startswith('v_permlane') and ov(vd, c.src): n = max(n, 2)
            if ('dpp' in c.op or 'row_' in c.mods or 'quad_perm' in c.mods) and ov(vd, c.src): n = max(n, 2)
            if ov(sd, c.src): n = max(n, 2)
            if c.op.startswith('v_readlane') and ov(sd, c.src): n = max(n, 4)
        if c.is_vmem and ov(sd, c.src): n = max(n, 5)
        if p.is_dot:
            if c.op == p.op and c.is_dot:
                ab = sum([regs_of(o) for o in c.ops[1:3]], [])
                if ov(vd, ab): n = max(n, 3)
            elif ov(vd, c.src) or ov(vd, c.dst):
                n = max(n, 3)
    if p.is_mfma:
        big = 12 if p.passes == 8 else 8
        if c.is_mfma:
            if ov(p.dst, c.A + c.B): n = max(n, big)
            if ov(p.dst, c.C) and not (c.C == p.dst and c.passes == p.passes): n = max(n, big - 2)
            if ov(p.dst, c.dst) and not (c.C == p.dst): n = max(n, big - 2)
        elif c.is_valu or c.is_vmem or c.is_ds:
            if ov(p.dst, c.src) or ov(p.dst, c.dst): n = max(n, big)
        if c.is_valu and ov(p.C, c.dst): n = max(n, 7 if p.passes == 8 else 3)
    if p.is_salu and ('s', 'm0') in p.dst and c.is_vmem and getattr(c, 'lds', False): n = max(n, 1)
    if p.is_vmem and 'store' in p.op and ('x4' in p.op or 'x3' in p.op):
        if ov(p.data, c.dst): n = max(n, 2 if c.is_valu else 1)
    return n

def check(name, lines):
    ins = []; labels = {}
    for l in lines:
        t = l.split(';')[0].strip()
        if not t: continue
        if t.endswith(':'):
            labels[t[:-1]] = len(ins); continue
        if t.startswith('.'): continue
        ins.append(Ins(t))
    probs = []
    def scan(seq, tag):
        for i, c in enumerate(seq):
            d = 0; dm = 0; seen = False
            for j in range(i - 1, max(-1, i - 24), -1):
                p = seq[j]
                n = need(p, c)
                dd = max(d, dm) if p.is_mfma else d
                if p.is_mfma and p.passes == 8:
                    dm = (dm if seen else d - 1) + 8; seen = True
                if n > dd:
                    probs.append(f'{name}{tag}: need {n} have {d}: [{p.line}] -> [{c.line}]')
                d += p.ws
                if p.op in ('s_branch', 's_endpgm'): break
                if d >= 20: break
    scan(ins, '')
    for i, c in enumerate(ins):
        if c.op.startswith('s_cbranch') or c.op == 's_branch':
            tgt = labels.get(c.ops[0])
            if tgt is None: continue
            pre = ins[max(0, i - 24): i + 1]
            for j in range(len(pre) - 2, -1, -1):
                if pre[j].op in ('s_branch', 's_endpgm'):
                    pre = pre[j + 1:]; break
            post = ins[tgt: tgt + 24]
            seq = pre + post
            for a, cc in enumerate(seq):
                if a < len(pre): continue
                d = 0
                for j in range(a - 1, -1, -1):
                    p = seq[j]
                    if j < len(pre):
                        n = need(p, cc)
                        if n > d:
                            probs.append(f'{name} (branch {c.line}): need {n} have {d}: [{p.line}] -> [{cc.line}]')
                    d += p.ws
                    if d >= 20: break
                    if j >= len(pre) and p.op in ('s_branch', 's_endpgm'): break
                if cc.op in ('s_branch', 's_endpgm'): break
    return probs
```

```python
import sys, struct, math
sys.path.insert(0, 'tools')
from asmlib import *
import hazard

MB = 1 << 20
WS_Q, WS_K, WS_V, WS_O, WS_H, WS_H1 = 0, 2 * MB, 4 * MB, 6 * MB, 8 * MB, 10 * MB
WS_ST = 17 * MB
WS_CS = 17 * MB + 512 * 1024
H1_SIZE = 2048 * 1792 * 2
E = 131072

def fbits(x):
    return '0x%08x' % struct.unpack('<I', struct.pack('<f', x))[0]

def vr(b, n=4):
    return f'v[{b}:{b+n-1}]'

MFMA = 'v_mfma_f32_32x32x16_bf16'
OPT = {}

def mix(k, mf, fill, per):
    fill = list(fill)
    for i, m in enumerate(mf):
        k(m)
        n = per[i] if isinstance(per, (list, tuple)) else per
        for _ in range(n):
            if fill: k(fill.pop(0))
    for f in fill: k(f)

def head(k, nwg, split, remap=''):
    k(f'''
    s_load_dwordx16 s[16:31], s[0:1], 0
    s_load_dwordx2 s[32:33], s[0:1], 64
    s_cmp_ge_u32 s2, {nwg}
    s_cbranch_scc1 {k.name}_end
    v_lshrrev_b32 v2, 6, v0
    v_and_b32 v1, 63, v0
    v_readfirstlane_b32 s3, v2
    s_and_b32 s40, s2, 7
    s_lshr_b32 s41, s2, 3
    {remap}
    s_cmp_ge_u32 s3, {split}
    s_cbranch_scc1 {k.name}_cons
    ''')

def tail(k):
    k.label(f'{k.name}_end')
    k('s_endpgm')

def w_addr(k, dst, tmp, cw=True):
    k(f'''
    v_and_b32 v{tmp}, 44, v1
    v_lshlrev_b32 v{dst}, 5, v{tmp}
    v_and_b32 v{tmp}, 16, v1
    v_lshl_or_b32 v{dst}, v{tmp}, 1, v{dst}
    v_and_b32 v{tmp}, 2, v1
    v_lshl_or_b32 v{dst}, v{tmp}, 2, v{dst}
    v_and_b32 v{tmp}, 1, v1
    v_lshl_or_b32 v{dst}, v{tmp}, 4, v{dst}
    v_and_b32 v{tmp}, 8, v1
    v_lshl_or_b32 v{dst}, v{tmp}, 3, v{dst}
    ''')
    if cw:
        k(f'''
        s_lshl_b32 s7, s5, 6
        v_xor_b32 v{dst}, s7, v{dst}
        ''')

def w_lane_part(k, dst, tmp, pitch):
    k(f'''
    v_lshrrev_b32 v{tmp}, 3, v1
    v_mul_u32_u24 v{dst}, {pitch}, v{tmp}
    v_and_b32 v{tmp}, 16, v1
    v_lshrrev_b32 v{tmp}, 2, v{tmp}
    v_xor_b32 v{tmp}, v{tmp}, v1
    v_and_b32 v{tmp}, 7, v{tmp}
    v_lshl_add_u32 v{dst}, v{tmp}, 4, v{dst}
    ''')

def vo_chain(k, vo, vx, sA, sB):
    for i in range(1, 8):
        s = sB if i == 4 else sA
        if vx is None:
            k(f'v_add_u32 v{vo+i}, s{s}, v{vo+i-1}')
        else:
            k(f'v_xad_u32 v{vo+i}, v{vo+i-1}, v{vx}, s{s}')

def dma_issue(k, vo):
    k('s_mov_b32 m0, s14')
    k('s_add_u32 s7, s14, 32768')
    for i in range(4):
        k(f'buffer_load_dwordx4 v{vo+i}, s[8:11], s12 offen offset:{i*1024} lds')
    k('s_add_u32 m0, s14, 4096')
    k('s_and_b32 s14, s7, 0x1ffff')
    for i in range(4):
        k(f'buffer_load_dwordx4 v{vo+4+i}, s[8:11], s12 offen offset:{i*1024} lds')
    k('s_add_u32 s12, s12, s13')

def srd(k, d, lo, hi, off, nrec):
    if off:
        k(f's_add_u32 s{d}, s{lo}, {off}\ns_addc_u32 s{d+1}, s{hi}, 0')
    else:
        k(f's_mov_b32 s{d}, s{lo}\ns_mov_b32 s{d+1}, s{hi}')
    k(f's_mov_b32 s{d+2}, {nrec}\ns_mov_b32 s{d+3}, 0x00020000')

def unpack8(k, dst, src):
    for i in range(4):
        k(f'v_lshlrev_b32 v{dst+2*i}, 16, v{src+i}')
        k(f'v_and_b32 v{dst+2*i+1}, 0xffff0000, v{src+i}')

def dma_half(k, vo, h):
    if h == 0:
        k('s_mov_b32 m0, s14')
        k('s_add_u32 s7, s14, 32768')
        for i in range(4):
            k(f'buffer_load_dwordx4 v{vo+i}, s[8:11], s12 offen offset:{i*1024} lds')
    else:
        k('s_add_u32 m0, s14, 4096')
        k('s_and_b32 s14, s7, 0x1ffff')
        for i in range(4):
            k(f'buffer_load_dwordx4 v{vo+4+i}, s[8:11], s12 offen offset:{i*1024} lds')
        k('s_add_u32 s12, s12, s13')

def loader_stream(k, vo, NC, D2, extra=None, nextra=0):
    name = k.name
    k('; @T 1')
    k(f's_mov_b32 s15, 0')
    D = D2 // 2
    if D2 % 2 == 0:
        k.label(f'{name}_li')
        dma_half(k, vo, 0); dma_half(k, vo, 1)
        k(f'''
        s_add_u32 s15, s15, 1
        s_cmp_lt_u32 s15, {D}
        s_cbranch_scc1 {name}_li
        s_cmp_eq_u32 s15, {NC}
        s_cbranch_scc1 {name}_lt
        ''')
    else:
        k(f's_branch {name}_la')
        k.label(f'{name}_li')
        dma_half(k, vo, 1)
        k(f'''
        s_add_u32 s15, s15, 1
        s_cmp_eq_u32 s15, {NC}
        s_cbranch_scc1 {name}_lt
        ''')
        k.label(f'{name}_la')
        dma_half(k, vo, 0)
        k(f'''
        s_cmp_lt_u32 s15, {D}
        s_cbranch_scc1 {name}_li
        ''')
    k(f'''
    s_waitcnt vmcnt({4*(D2-2)})
    ; @TI 2 s15 {D}
    s_barrier
    ; @TI 3 s15 {D}
    s_branch {name}_li
    ''')
    k.label(f'{name}_lt')
    k('; @T 4')
    if extra: extra()
    for c in range(D):
        k(f's_waitcnt vmcnt({8*(D-1-c)+nextra})\ns_barrier')
    k('; @T 5')

def stats_to_ops(k, sx, sxx, M, R, t):
    k(f'''
    v_mul_f32 v{sx}, {fbits(-1.0/512)}, v{sx}
    v_mul_f32 v{sxx}, {fbits(1.0/512)}, v{sxx}
    v_fma_f32 v{sxx}, -v{sx}, v{sx}, v{sxx}
    v_and_b32 v{t}, 0xffff0000, v{sx}
    v_max_f32 v{sxx}, 0, v{sxx}
    v_sub_f32 v{sx}, v{sx}, v{t}
    v_add_f32 v{sxx}, {fbits(1e-5)}, v{sxx}
    v_cndmask_b32 v{sx}, v{sx}, v{t}, vcc
    v_rsq_f32 v{R}, v{sxx}
    v_cvt_pk_bf16_f32 v{M}, v{sx}, v{sx}
    ''')

def split_op(c, t):
    return [f'v_and_b32 v{t}, 0xffff0000, v{c}', f'v_sub_f32 v{c}, v{c}, v{t}', f'v_cvt_pk_bf16_f32 v{c}, v{t}, v{c}']

def ln_gemm(name, which):
    K1 = which == 1
    nwg = 256 if K1 else 224
    TX, TW = (1, 3) if K1 else (2, 2)
    NACC = TX * TW
    D = OPT.get('d1', 6) if K1 else OPT.get('d4', 4)
    VO, XA, WA, ST, F, ACC = 8, 16, 20, 22, 32, 96
    k = Kernel(name, (nwg, 1, 1), (512, 1, 1), lds=E + 4096, vgpr=ACC + 16 * NACC, sgpr=64)
    remap = '''
    s_lshr_b32 s7, s40, 1
    s_lshl_b32 s7, s7, 3
    s_and_b32 s40, s40, 1
    s_lshl_b32 s40, s40, 2
    s_and_b32 s6, s41, 3
    s_add_u32 s40, s40, s6
    s_lshr_b32 s41, s41, 2
    s_add_u32 s41, s41, s7
    ''' if K1 and not OPT.get('nomap') else ''
    head(k, nwg, 4, remap)
    k('s_lshl_b32 s14, s3, 13')
    if K1:
        k(f'''
        s_cmp_eq_u32 s3, 0
        s_cbranch_scc1 {name}_rx
        ''')
        w_lane_part(k, VO, 2, 3072)
        k(f'''
        v_mov_b32 v5, 0
        s_movk_i32 s44, {24576-1024}
        s_movk_i32 s45, {24576+3072}
        s_mov_b32 s13, {64*3072}
        s_sub_u32 s12, s3, 1
        s_lshl_b32 s12, s12, 10
        s_lshl_b32 s7, s40, 7
        s_add_u32 s12, s12, s7
        s_mov_b32 s10, {512*1536*2}
        s_waitcnt lgkmcnt(0)
        s_mov_b32 s8, s18
        s_mov_b32 s9, s19
        s_branch {name}_rj
        ''')
        k.label(f'{name}_rx')
        k(f'''
        v_lshrrev_b32 v2, 3, v1
        v_lshlrev_b32 v{VO}, 10, v2
        v_lshrrev_b32 v2, 4, v1
        v_xor_b32 v2, v2, v1
        v_and_b32 v2, 7, v2
        v_lshl_add_u32 v{VO}, v2, 4, v{VO}
        v_mov_b32 v5, 64
        s_movk_i32 s44, {8192-1024}
        s_movk_i32 s45, {8192+3072}
        s_movk_i32 s13, 128
        s_lshl_b32 s12, s41, 16
        s_mov_b32 s10, {2048*512*2}
        s_waitcnt lgkmcnt(0)
        s_mov_b32 s8, s16
        s_mov_b32 s9, s17
        ''')
        k.label(f'{name}_rj')
        k('s_mov_b32 s11, 0x00020000')
        vo_chain(k, VO, 5, 44, 45)
        loader_stream(k, VO, 8, D)
        k('s_endpgm')
    else:
        blk4 = '''
        s_cmp_ge_u32 s41, 14
        s_cselect_b32 s42, 1, 0
        s_cselect_b32 s7, 14, 0
        s_sub_u32 s43, s41, s7
        s_lshl_b32 s7, s40, 1
        s_add_u32 s42, s42, s7
        '''
        k(blk4)
        k(f'''
        v_lshlrev_b32 v6, 4, v1
        s_cmp_lt_u32 s3, 2
        s_cbranch_scc1 {name}_rx
        ''')
        w_lane_part(k, VO, 2, 3584)
        k(f'''
        s_movk_i32 s44, {8*3584-1024}
        s_movk_i32 s45, {8*3584+3072}
        s_mov_b32 s13, {64*3584}
        s_sub_u32 s12, s3, 2
        s_lshl_b32 s12, s12, 7
        s_lshl_b32 s7, s43, 8
        s_add_u32 s12, s12, s7
        s_mov_b32 s10, {512*1792*2}
        s_waitcnt lgkmcnt(0)
        s_mov_b32 s8, s24
        s_mov_b32 s9, s25
        s_branch {name}_rj
        ''')
        k.label(f'{name}_rx')
        k(f'''
        v_mov_b32 v{VO}, v6
        s_movk_i32 s44, 0
        s_mov_b32 s45, 32768
        s_movk_i32 s13, 4096
        s_lshl_b32 s12, s42, 17
        s_lshl_b32 s7, s3, 16
        s_add_u32 s12, s12, s7
        s_mov_b32 s10, {2*MB}
        s_waitcnt lgkmcnt(0)
        s_add_u32 s8, s32, {WS_H}
        s_addc_u32 s9, s33, 0
        ''')
        k.label(f'{name}_rj')
        k('s_mov_b32 s11, 0x00020000')
        vo_chain(k, VO, None, 44, 45)
        def extra():
            srd(k, 36, 32, 33, WS_ST, MB)
            k(f'''
            s_lshl_b32 s46, s42, 2
            s_add_u32 s46, s46, s3
            s_lshl_b32 s46, s46, 12
            s_lshl_b32 s47, s43, 2
            s_add_u32 s47, s47, s3
            s_lshl_b32 s47, s47, 9
            s_add_u32 s47, s47, {WS_CS-WS_ST}
            v_and_b32 v7, 0x1f0, v6
            ''')
            for q in range(4):
                k(f'buffer_load_dwordx4 {vr(16+4*q)}, v6, s[36:39], s46 offen offset:{q*1024}')
            k(f'buffer_load_dwordx4 {vr(32)}, v7, s[36:39], s47 offen')
        loader_stream(k, VO, 8, D, extra, 5)
        k(f'''
        v_cmp_gt_u32 vcc, 32, v1
        s_lshl_b32 s7, s3, 10
        s_add_u32 s7, s7, {E}
        v_add_u32 v6, s7, v6
        s_waitcnt vmcnt(0)
        ''')
        for q in range(1, 4):
            k(f'v_pk_add_f32 v[16:17], v[16:17], {vr(16+4*q,2)}\nv_pk_add_f32 v[18:19], v[18:19], {vr(18+4*q,2)}')
        k(f'''
        v_pk_add_f32 v[32:33], v[32:33], v[34:35]
        v_pk_add_f32 v[16:17], v[16:17], v[18:19]
        v_add_f32 v22, v32, v33
        v_add_f32 v16, v16, v17
        v_mov_b32 v17, v16
        ''')
        for s in split_op(22, 23): k(s)
        k('v_permlane32_swap_b32 v16, v17')
        stats_to_ops(k, 16, 17, 20, 21, 18)
        k(f'''
        s_nop 0
        ds_write_b96 v6, v[20:22]
        s_waitcnt lgkmcnt(0)
        s_barrier
        ; @T 6
        s_endpgm
        ''')
    k.label(f'{name}_cons')
    k('''
    s_and_b32 s4, s3, 1
    s_bfe_u32 s5, s3, 0x10001
    s_mov_b32 s34, 0x8000
    ''')
    w_addr(k, WA, 2)
    if K1:
        k(f'''
        s_xor_b32 s6, s4, s5
        s_mov_b32 s35, 0x3f803f80
        s_lshl_b32 s7, s6, 12
        v_add_u32 v{WA}, s7, v{WA}
        v_xor_b32 v{WA+1}, 0x1000, v{WA}
        v_lshrrev_b32 v2, 1, v1
        v_lshrrev_b32 v3, 5, v1
        v_xor_b32 v2, v2, v3
        v_and_b32 v2, 7, v2
        v_and_b32 v3, 31, v1
        v_lshlrev_b32 v3, 7, v3
        v_lshl_or_b32 v2, v2, 4, v3
        s_lshl_b32 s7, s4, 12
        s_lshl_b32 s42, s6, 6
        s_or_b32 s7, s7, s42
        v_xor_b32 v{XA}, s7, v2
        v_xor_b32 v{XA+1}, 32, v{XA}
        v_xor_b32 v{XA+2}, 64, v{XA}
        v_xor_b32 v{XA+3}, 0x60, v{XA}
        ''')
        zero = list(range(ST, ST + 6))
    else:
        k(blk4)
        k(f'''
        v_lshlrev_b32 v8, 4, v1
        s_lshl_b32 s7, s4, 13
        v_or_b32 v{XA}, s7, v8
        ''')
        zero = []
    for r in zero + list(range(F + 32, F + 64)) + list(range(ACC, ACC + 16 * NACC)):
        k(f'v_mov_b32 v{r}, 0')
    k('s_mov_b32 s15, 0')

    FX = lambda s, j: F + 16 * s + 4 * j
    FW = lambda s, p: F + 16 * s + 4 * TX + 4 * p
    nrd = TX + 2 * TW
    WBASE = 8192 if K1 else 16384
    def reads(s):
        o = []
        for j in range(TX):
            if K1:
                o.append(f'ds_read_b128 {vr(FX(s, j))}, v{XA+s}')
            else:
                o.append(f'ds_read_b128 {vr(FX(s, j))}, v{XA} offset:{j*4096+s*1024}')
        for p in range(TW):
            for sec in range(2):
                if K1:
                    o.append(f'ds_read_b64_tr_b16 {vr(FW(s, p)+2*sec, 2)}, v{WA+(s>>1)} offset:{WBASE+p*8192+(s&1)*2048+sec*512}')
                else:
                    o.append(f'ds_read_b64_tr_b16 {vr(FW(s, p)+2*sec, 2)}, v{WA} offset:{WBASE+p*8192+s*2048+sec*512}')
        return o
    def mf(s, j, p):
        a = ACC + 16 * (j * TW + p)
        if K1 and p == 2:
            return f'{MFMA} {vr(a,16)}, {vr(FX(s,j))}, {vr(FW(s,p))}, {vr(a,16)}'
        return f'{MFMA} {vr(a,16)}, {vr(FW(s,p))}, {vr(FX(s,j))}, {vr(a,16)}'
    def mfmas(s):
        return [mf(s, j, p) for j in range(TX) for p in range(TW)]
    def dots(s):
        for i in range(4):
            x = FX(s, 0) + i
            k(f'v_dot2c_f32_bf16 v{ST}, s35, v{x}')
            k(f'v_dot2c_f32_bf16 v{ST+1}, v{x}, v{x}')
            for p in range(TW):
                k(f'v_dot2c_f32_bf16 v{ST+2+p}, s35, v{FW(s,p)+i}')
    per = [3, 2, 2] if K1 else [2, 2, 2, 0]
    k('; @T 1')
    k.label(f'{name}_loop')
    k('s_barrier')
    k('; @TI 2 s15 0')
    k('; @TI 3 s15 4')
    r0 = reads(0)
    for x in r0[:3]: k(x)
    mix(k, mfmas(2), r0[3:] + reads(1)[:2], per)
    mix(k, mfmas(3), reads(1)[2:], per)
    k(f's_waitcnt lgkmcnt({nrd})')
    mix(k, mfmas(0), reads(2), per)
    if K1: dots(0)
    k(f's_waitcnt lgkmcnt({nrd})')
    if K1:
        upd = [f'v_xor_b32 v{r}, s34, v{r}' for r in list(range(XA, XA + 4)) + [WA, WA + 1]]
        mix(k, mfmas(1), reads(3), [4, 3, 0])
        for u in upd: k(u)
        k('s_xor_b32 s34, s34, 0x10000\ns_add_u32 s15, s15, 1\ns_cmp_lt_u32 s15, 8')
        dots(1)
    else:
        upd = [f'v_xor_b32 v{r}, s34, v{r}' for r in (XA, WA)] + ['s_xor_b32 s34, s34, 0x10000', 's_add_u32 s15, s15, 1', 's_cmp_lt_u32 s15, 8']
        mix(k, mfmas(1), reads(3) + upd, [3, 3, 5, 0])
    k('s_waitcnt lgkmcnt(0)')
    k(f's_cbranch_scc1 {name}_loop')
    k('; @T 4')
    if K1:
        pre = f'''v_and_b32 v3, 31, v1
        v_lshrrev_b32 v4, 5, v1
        v_lshlrev_b32 v5, 4, v3
        v_lshlrev_b32 v6, 5, v3
        v_permlane32_swap_b32 v{ST}, v{ST+1}
        v_permlane32_swap_b32 v{ST+2}, v{ST+3}
        v_permlane32_swap_b32 v{ST+4}, v{ST+5}
        s_lshl_b32 s7, s4, 9
        s_add_u32 s46, s7, {E}
        s_lshl_b32 s7, s5, 10
        s_add_u32 s47, s7, {E+1024}
        v_add_u32 v5, s46, v5
        v_add_u32 v6, s47, v6
        s_lshl_b32 s46, s5, 3
        s_lshl_b32 s47, s4, 4
        v_lshl_add_u32 v7, v4, 2, v5
        v_lshl_add_u32 v8, v4, 2, v6
        v_add_f32 v{ST}, v{ST}, v{ST+1}
        v_add_f32 v{ST+2}, v{ST+2}, v{ST+3}
        v_add_f32 v{ST+4}, v{ST+4}, v{ST+5}
        v_add_u32 v7, s46, v7
        v_add_u32 v8, s47, v8
        ds_write_b32 v7, v{ST}
        ds_write_b32 v8, v{ST+2}
        ds_write_b32 v8, v{ST+4} offset:8'''.split('\n')
        m2 = mfmas(2); m3 = mfmas(3)
        mix(k, m2[:2], pre, [12, 13])
        k('s_waitcnt lgkmcnt(0)\ns_barrier')
        k('; @T 5')
        k(f'''
        ds_read_b128 v[8:11], v5
        ds_read_b128 v[12:15], v6
        ds_read_b128 v[16:19], v6 offset:16
        ''')
        adr = f'''s_add_u32 s36, s32, 0
        s_addc_u32 s37, s33, 0
        s_mov_b32 s38, {6*MB}
        s_mov_b32 s39, 0x00020000
        s_lshl_b32 s7, s40, 2
        s_lshl_b32 s48, s5, 1
        s_add_u32 s7, s7, s48
        s_lshl_b32 s7, s7, 6
        s_lshl_b32 s48, s41, 1
        s_add_u32 s48, s48, s4
        s_add_u32 s7, s7, s48
        s_lshl_b32 s48, s7, 10
        s_add_u32 s49, s48, 0x10000
        s_add_u32 s50, s48, {WS_K}
        s_add_u32 s51, s48, {WS_K+0x10000}
        s_add_u32 s52, s48, {WS_V}
        s_lshl_b32 s53, s3, 7
        s_add_u32 s53, s53, {E+3072-512}
        v_lshlrev_b32 v2, 4, v1
        v_and_b32 v7, 16, v1
        v_lshlrev_b32 v7, 12, v7
        v_and_b32 v5, 15, v1
        v_lshl_or_b32 v7, v5, 4, v7
        v_lshl_or_b32 v7, v4, 8, v7
        v_lshl_add_u32 v5, v3, 2, s53
        v_lshl_add_u32 v6, v4, 4, s53
        v_cmp_gt_u32 vcc, 32, v1
        v_mov_b32 v21, 0
        v_mov_b32 v22, 0
        v_mov_b32 v23, 0
        v_mov_b32 v25, 0
        v_mov_b32 v27, 0
        v_mov_b32 v29, 0
        v_mov_b32 v30, 0
        v_mov_b32 v31, 0'''.split('\n')
        mix(k, [m2[2], m3[0]], adr, [18, 17])
        k(f'''
        s_waitcnt lgkmcnt(0)
        v_add_f32 v8, v8, v10
        v_add_f32 v10, v9, v11
        v_add_f32 v24, v12, v16
        v_add_f32 v26, v13, v17
        v_add_f32 v28, v14, v18
        ''')
        k(m3[1])
        stats_to_ops(k, 8, 10, 20, 9, 11)
        for s in split_op(24, 12): k(s)
        k(m3[2])
        k('ds_write_b32 v5, v9')
        for s in split_op(26, 13) + split_op(28, 14): k(s)
        k(f'{MFMA} {vr(ACC,16)}, v[24:27], v[20:23], {vr(ACC,16)}')
        k(f'v_mul_f32 v10, {fbits(0.25*math.log2(math.e))}, v9')
        k('s_waitcnt lgkmcnt(0)')
        for q in range(4):
            k(f'ds_read_b128 {vr(F+4*q)}, v6 offset:{q*32}')
        k(f'{MFMA} {vr(ACC+16,16)}, v[26:29], v[20:23], {vr(ACC+16,16)}')
        k(f'{MFMA} {vr(ACC+32,16)}, v[20:23], v[28:31], {vr(ACC+32,16)}')
        k('; @T 6')
        k('s_nop 3')
        k('v_mov_b32 v12, v9')
        for t, sc, so in ((0, 10, (48, 49)), (1, 12, (50, 51))):
            a = ACC + 16 * t; c = F + 16 + 8 * t
            for i in range(8):
                k(f'v_pk_mul_f32 {vr(a+2*i,2)}, {vr(a+2*i,2)}, {vr(sc,2)} op_sel_hi:[1,0]')
            for i in range(8):
                k(f'v_cvt_pk_bf16_f32 v{c+i}, v{a+2*i}, v{a+2*i+1}')
            for j in range(2):
                k(f'buffer_store_dwordx4 {vr(c+4*j)}, v2, s[36:39], s{so[j]} offen')
        a = ACC + 32
        k('s_waitcnt lgkmcnt(0)')
        for i in range(8):
            k(f'v_pk_mul_f32 {vr(a+2*i,2)}, {vr(a+2*i,2)}, {vr(F+2*i,2)}')
        for i in range(8):
            k(f'v_cvt_pk_bf16_f32 v{F+32+i}, v{a+2*i}, v{a+2*i+1}')
        for j in range(2):
            k(f'buffer_store_dwordx4 {vr(F+32+4*j)}, v7, s[36:39], s52 offen offset:{j*512}')
    else:
        k(f'''
        s_barrier
        ; @T 5
        s_lshl_b32 s7, s4, 11
        s_add_u32 s7, s7, {E}
        v_add_u32 v2, s7, v8
        s_lshl_b32 s7, s5, 10
        s_add_u32 s7, s7, {E+8}
        v_add_u32 v3, s7, v8
        ds_read_b64 v[10:11], v2
        ds_read_b64 v[12:13], v2 offset:1024
        ds_read_b32 v24, v3
        ds_read_b32 v26, v3 offset:2048
        ''')
        adr = f'''s_add_u32 s36, s32, {WS_H1}
        s_addc_u32 s37, s33, 0
        s_mov_b32 s38, {H1_SIZE}
        s_mov_b32 s39, 0x00020000
        s_lshl_b32 s7, s42, 2
        s_lshl_b32 s48, s4, 1
        s_add_u32 s7, s7, s48
        s_mul_i32 s7, s7, 112
        s_lshl_b32 s48, s43, 3
        s_add_u32 s7, s7, s48
        s_lshl_b32 s48, s5, 1
        s_add_u32 s7, s7, s48
        s_lshl_b32 s48, s7, 10
        s_add_u32 s49, s48, 4096
        s_add_u32 s50, s48, {112*1024}
        s_add_u32 s51, s48, {112*1024+4096}
        v_mov_b32 v17, 0
        v_mov_b32 v18, 0
        v_mov_b32 v19, 0
        v_mov_b32 v21, 0
        v_mov_b32 v22, 0
        v_mov_b32 v23, 0
        v_mov_b32 v25, 0
        v_mov_b32 v27, 0
        v_mov_b32 v28, 0
        v_mov_b32 v29, 0'''.split('\n')
        mix(k, mfmas(2), adr, [7, 7, 7, 5])
        k('s_waitcnt lgkmcnt(0)\nv_mov_b32 v16, v10\nv_mov_b32 v20, v12\nv_mov_b32 v10, v11\nv_mov_b32 v12, v13')
        def epi(t):
            j, p = t >> 1, t & 1
            a = ACC + 16 * t; o = F + 8 * t
            e = [f'v_mul_f32 v{a+i}, v{a+i}, v{10+2*j}' for i in range(16)]
            e2 = []
            for i in range(8):
                e2 += [e[2*i], e[2*i+1]]
            e2 += [f'v_cvt_pk_bf16_f32 v{o+i}, v{a+2*i}, v{a+2*i+1}' for i in range(8)]
            e2 += [f'v_pk_max_i16 v{o+i}, v{o+i}, 0' for i in range(8)]
            e2 += [f'buffer_store_dwordx4 {vr(o+4*jj)}, v8, s[36:39], s{48+2*j+p} offen offset:{jj*1024}' for jj in range(2)]
            return e2
        def fin(t):
            j, p = t >> 1, t & 1
            a = ACC + 16 * t
            return [mf(3, j, p), f'{MFMA} {vr(a,16)}, {vr(24+2*p)}, {vr(16+4*j)}, {vr(a,16)}']
        for m in fin(0) + fin(1): k(m)
        k('; @T 6')
        mix(k, fin(2) + fin(3), epi(0), [9, 9, 9, 7])
        for t in (1, 2, 3):
            for x in epi(t): k(x)
    k('; @T 7')
    tail(k)
    return k

def res_gemm(name, which):
    K3 = which == 3
    VO, XA, WA, RS, F, ACC = 8, 16, 17, 20, 32, 96
    NC = 4 if K3 else 14
    D = OPT.get('d3', 4) if K3 else OPT.get('d5', 5)
    k = Kernel(name, (256, 1, 1), (512, 1, 1), lds=E, vgpr=ACC + 16, sgpr=64)
    head(k, 256, 4)
    blk = '''
    s_lshr_b32 s42, s41, 3
    s_lshl_b32 s7, s40, 2
    s_add_u32 s42, s42, s7
    s_and_b32 s43, s41, 7
    '''
    k(blk)
    k(f'''
    s_lshl_b32 s14, s3, 13
    s_cmp_lt_u32 s3, 2
    s_cbranch_scc1 {name}_rx
    ''')
    w_lane_part(k, VO, 2, 1024)
    k(f'''
    s_movk_i32 s44, {8192-1024}
    s_movk_i32 s45, {8192+3072}
    s_mov_b32 s13, {128*1024}
    s_sub_u32 s12, s3, 2
    s_lshl_b32 s12, s12, 16
    s_lshl_b32 s7, s43, 7
    s_add_u32 s12, s12, s7
    s_mov_b32 s10, {512*512*2 if K3 else 1792*512*2}
    s_waitcnt lgkmcnt(0)
    s_mov_b32 s8, s{20 if K3 else 26}
    s_mov_b32 s9, s{21 if K3 else 27}
    s_branch {name}_rj
    ''')
    k.label(f'{name}_rx')
    k(f'''
    v_lshlrev_b32 v{VO}, 4, v1
    s_movk_i32 s44, 0
    s_movk_i32 s45, 4096
    s_movk_i32 s13, 8192
    s_lshl_b32 s12, s42, 1
    s_add_u32 s12, s12, s3
    s_mul_i32 s12, s12, {32768 if K3 else 112*1024}
    s_mov_b32 s10, {2*MB if K3 else H1_SIZE}
    s_waitcnt lgkmcnt(0)
    s_add_u32 s8, s32, {WS_O if K3 else WS_H1}
    s_addc_u32 s9, s33, 0
    ''')
    k.label(f'{name}_rj')
    k('s_mov_b32 s11, 0x00020000')
    vo_chain(k, VO, None, 44, 45)
    loader_stream(k, VO, NC, D)
    k('s_endpgm')
    k.label(f'{name}_cons')
    k(blk)
    k('''
    s_and_b32 s4, s3, 1
    s_bfe_u32 s5, s3, 0x10001
    s_mov_b32 s34, 0x8000
    ''')
    k(f'''
    v_lshlrev_b32 v7, 4, v1
    s_lshl_b32 s7, s4, 13
    v_or_b32 v{XA}, s7, v7
    v_and_b32 v2, 31, v1
    v_lshlrev_b32 v6, 10, v2
    v_lshrrev_b32 v2, 5, v1
    v_lshl_or_b32 v6, v2, 4, v6
    s_lshl_b32 s46, s42, 1
    s_add_u32 s46, s46, s4
    s_lshl_b32 s47, s43, 1
    s_add_u32 s47, s47, s5
    s_lshl_b32 s48, s46, 15
    s_lshl_b32 s7, s47, 6
    s_add_u32 s49, s48, s7
    s_lshl_b32 s7, s47, 11
    s_add_u32 s48, s48, s7
    s_waitcnt lgkmcnt(0)
    ''')
    if K3:
        srd(k, 36, 16, 17, 0, 2 * MB)
        for j in range(2):
            k(f'buffer_load_dwordx4 {vr(RS+4*j)}, v6, s[36:39], s49 offen offset:{j*32}')
    else:
        srd(k, 36, 32, 33, WS_H, 2 * MB)
        for j in range(2):
            k(f'buffer_load_dwordx4 {vr(RS+4*j)}, v7, s[36:39], s48 offen offset:{j*1024}')
    w_addr(k, WA, 2)
    if K3:
        srd(k, 36, 32, 33, WS_H, 10 * MB)
        k(f'''
        s_lshl_b32 s50, s46, 12
        s_lshr_b32 s7, s47, 2
        s_lshl_b32 s7, s7, 10
        s_add_u32 s50, s50, s7
        s_and_b32 s7, s47, 3
        s_lshl_b32 s7, s7, 2
        s_add_u32 s50, s50, s7
        s_add_u32 s50, s50, {WS_ST-WS_H}
        s_mov_b32 s35, 0x3f803f80
        v_mov_b32 v2, 0
        v_mov_b32 v3, 0
        ''')
    else:
        srd(k, 36, 28, 29, 0, 2 * MB)
    k('s_mov_b32 s15, 0')
    k(f's_waitcnt vmcnt(0)')
    unpack8(k, ACC, RS)
    unpack8(k, ACC + 8, RS + 4)
    k('; @T 1')
    def reads(s):
        k(f'ds_read_b128 {vr(F+8*s)}, v{XA} offset:{s*1024}')
        for sec in range(2):
            k(f'ds_read_b64_tr_b16 {vr(F+8*s+4+2*sec, 2)}, v{WA} offset:{16384+s*2048+sec*512}')
    k.label(f'{name}_loop')
    k('s_barrier')
    k('; @TI 2 s15 0')
    for s in range(4):
        reads(s)
    for s in range(8):
        left = min(8, s + 4) - s - 1
        k(f's_waitcnt lgkmcnt({3*left})')
        k(f'{MFMA} {vr(ACC,16)}, {vr(F+8*s+4)}, {vr(F+8*s)}, {vr(ACC,16)}')
        if s + 4 < 8:
            reads(s + 4)
        if s == 4:
            k(f'v_xor_b32 v{XA}, s34, v{XA}\nv_xor_b32 v{WA}, s34, v{WA}\ns_xor_b32 s34, s34, 0x10000')
        if s == 5:
            k(f's_add_u32 s15, s15, 1\ns_cmp_lt_u32 s15, {NC}')
    k(f's_cbranch_scc1 {name}_loop')
    k('; @T 4')
    k('s_nop 10')
    for i in range(8):
        k(f'v_cvt_pk_bf16_f32 v{F+i}, v{ACC+2*i}, v{ACC+2*i+1}')
    for j in range(2):
        if K3:
            k(f'buffer_store_dwordx4 {vr(F+4*j)}, v7, s[36:39], s48 offen offset:{j*1024}')
        else:
            k(f'buffer_store_dwordx4 {vr(F+4*j)}, v6, s[36:39], s49 offen offset:{j*32}')
    if K3:
        for i in range(8):
            k(f'v_dot2c_f32_bf16 v2, s35, v{F+i}\nv_dot2c_f32_bf16 v3, v{F+i}, v{F+i}')
        k('''
        s_nop 2
        v_permlane32_swap_b32 v2, v3
        v_add_f32 v2, v2, v3
        buffer_store_dword v2, v7, s[36:39], s50 offen
        ''')
    k('; @T 7')
    tail(k)
    return k

def attention(name):
    ONES = 131072
    CSB = ONES + 12288
    QF, KA, VA, VI = 4, 8, 9, 10
    KF, VF, P, S, NEG, X, Y = 16, 24, 40, 48, 80, 96, 112
    DUM = 12
    k = Kernel(name, (256, 1, 1), (768, 1, 1), lds=CSB + 16384, vgpr=128, sgpr=64)
    head(k, 256, 4)
    k(f'''
    s_lshr_b32 s42, s41, 3
    s_lshl_b32 s7, s40, 2
    s_add_u32 s42, s42, s7
    v_lshlrev_b32 v{KA}, 4, v1
    s_lshr_b32 s7, s3, 1
    s_and_b32 s46, s3, 1
    s_mul_i32 s47, s46, 5120
    s_lshl_b32 s14, s7, 16
    s_lshl_b32 s12, s42, 16
    s_lshl_b32 s7, s7, 21
    s_add_u32 s12, s12, s7
    s_add_u32 m0, s14, s47
    s_add_u32 s13, s12, s47
    s_mov_b32 s10, {4*MB}
    s_mov_b32 s11, 0x00020000
    s_waitcnt lgkmcnt(0)
    s_add_u32 s8, s32, {WS_K}
    s_addc_u32 s9, s33, 0
    ; @T 1
    ''')
    for i in range(4):
        k(f'buffer_load_dwordx4 v{KA}, s[8:11], s13 offen offset:{i*1024} lds')
    k(f's_add_u32 m0, m0, 4096\ns_add_u32 s13, s13, 4096')
    k(f's_mul_i32 s47, s46, {27*1024}\ns_add_u32 s47, s47, {10*1024}')
    k(f'buffer_load_dwordx4 v{KA}, s[8:11], s13 offen lds')
    k(f'''
    s_add_u32 m0, s14, s47
    s_add_u32 s13, s12, s47
    s_mov_b32 s15, 0
    ''')
    k.label(f'{name}_ll')
    for i in range(3):
        k(f'buffer_load_dwordx4 v{KA}, s[8:11], s13 offen offset:{i*1024} lds')
    k(f'''
    s_add_u32 m0, m0, 3072
    s_add_u32 s13, s13, 3072
    s_add_u32 s15, s15, 1
    s_cmp_lg_u32 s15, {OPT.get('a0', 2)}
    s_cbranch_scc1 {name}_l2
    s_waitcnt vmcnt({3*OPT.get('a0', 2)})
    ; @T 2
    s_barrier
    ''')
    k.label(f'{name}_l2')
    k(f'''
    s_cmp_lt_u32 s15, 9
    s_cbranch_scc1 {name}_ll
    ; @T 3
    s_waitcnt vmcnt(0)
    ; @T 4
    s_barrier
    ; @T 5
    ''')
    k(f'''
    s_cmp_lg_u32 s3, 0
    s_cbranch_scc1 {name}_pf
    s_cmp_ge_u32 s2, 112
    s_cbranch_scc1 {name}_pf
    ''')
    w_lane_part(k, 16, 2, 3584)
    srd(k, 36, 24, 25, 0, 512 * 1792 * 2)
    k(f'''
    s_and_b32 s44, s2, 3
    s_lshr_b32 s45, s2, 2
    s_mul_i32 s13, s44, {128*3584}
    s_lshl_b32 s7, s45, 7
    s_add_u32 s13, s13, s7
    s_mov_b32 m0, {CSB}
    s_mov_b32 s15, 0
    ''')
    k.label(f'{name}_c1')
    k(f'''
    buffer_load_dwordx4 v16, s[36:39], s13 offen lds
    s_add_u32 m0, m0, 1024
    s_add_u32 s13, s13, {8*3584}
    s_add_u32 s15, s15, 1
    s_cmp_lt_u32 s15, 16
    s_cbranch_scc1 {name}_c1
    ''')
    w_addr(k, 17, 2, cw=False)
    k(f'''
    v_add_u32 v17, {CSB}, v17
    v_xor_b32 v18, 64, v17
    v_mov_b32 v20, 0x3f803f80
    v_mov_b32 v21, v20
    v_mov_b32 v22, v20
    v_mov_b32 v23, v20
    ''')
    for r in range(32, 64): k(f'v_mov_b32 v{r}, 0')
    k('s_mov_b32 s15, 0\ns_waitcnt vmcnt(0)')
    k.label(f'{name}_c2')
    k(f'''
    ds_read_b64_tr_b16 v[24:25], v17
    ds_read_b64_tr_b16 v[26:27], v17 offset:512
    ds_read_b64_tr_b16 v[28:29], v18
    ds_read_b64_tr_b16 v[30:31], v18 offset:512
    v_add_u32 v17, 2048, v17
    v_add_u32 v18, 2048, v18
    s_add_u32 s15, s15, 1
    s_cmp_lt_u32 s15, 8
    s_waitcnt lgkmcnt(0)
    {MFMA} v[32:47], v[20:23], v[24:27], v[32:47]
    {MFMA} v[48:63], v[20:23], v[28:31], v[48:63]
    s_cbranch_scc1 {name}_c2
    ''')
    srd(k, 36, 32, 33, WS_CS, 56 * 512)
    k(f'''
    v_cmp_gt_u32 vcc, 32, v1
    s_lshl_b32 s13, s45, 10
    s_lshl_b32 s7, s44, 2
    s_add_u32 s13, s13, s7
    s_nop 7
    v_cndmask_b32 v2, v48, v32, vcc
    buffer_store_dword v2, v{KA}, s[36:39], s13 offen
    ''')
    k.label(f'{name}_pf')
    k(f'''
    s_lshl_b32 s7, s41, 2
    s_add_u32 s7, s7, s3
    s_mul_i32 s50, s7, 14336
    s_lshl_b32 s51, s7, 12
    s_lshl_b32 s52, s7, 11
    s_lshl_b32 s53, s40, 18
    s_add_u32 s52, s52, s53
    s_lshl_b32 s7, s2, 2
    s_add_u32 s7, s7, s3
    s_mul_i32 s53, s7, 1792
    ''')
    if not OPT.get('nopf'):
        srd(k, 36, 26, 27, 0, 1792 * 1024)
        for i in range(2):
            k(f'buffer_load_dwordx4 {vr(DUM)}, v{KA}, s[36:39], s53 offen offset:{i*1024}')
        srd(k, 36, 24, 25, 0, 1792 * 1024)
        for i in range(14):
            k(f'buffer_load_dwordx4 {vr(DUM)}, v{KA}, s[36:39], s50 offen offset:{(i%4)*1024}')
            if i % 4 == 3: k('s_add_u32 s50, s50, 4096')
        srd(k, 36, 20, 21, 0, 512 * 1024)
        for i in range(4):
            k(f'buffer_load_dwordx4 {vr(DUM)}, v{KA}, s[36:39], s51 offen offset:{i*1024}')
        srd(k, 36, 16, 17, 0, 2 * MB)
        for i in range(2):
            k(f'buffer_load_dwordx4 {vr(DUM)}, v{KA}, s[36:39], s52 offen offset:{i*1024}')
    k('s_waitcnt vmcnt(0)\n; @T 6\ns_endpgm')
    k.label(f'{name}_cons')
    k(f'''
    s_lshr_b32 s42, s41, 3
    s_lshl_b32 s7, s40, 2
    s_add_u32 s42, s42, s7
    s_and_b32 s43, s41, 7
    s_lshl_b32 s43, s43, 3
    s_add_u32 s43, s43, s3
    s_sub_u32 s43, s43, 4
    v_lshlrev_b32 v{KA}, 4, v1
    s_lshl_b32 s44, s42, 16
    s_lshl_b32 s7, s43, 10
    s_add_u32 s45, s44, s7
    s_mov_b32 s10, {8*MB}
    s_mov_b32 s11, 0x00020000
    v_mov_b32 v12, 0x3f803f80
    v_mov_b32 v13, v12
    v_mov_b32 v14, v12
    v_mov_b32 v15, v12
    v_lshlrev_b32 v2, 4, v0
    v_add_u32 v2, {ONES-4096}, v2
    v_lshlrev_b32 v3, 3, v0
    v_add_u32 v3, {ONES+8192-2048}, v3
    s_waitcnt lgkmcnt(0)
    s_mov_b32 s8, s32
    s_mov_b32 s9, s33
    buffer_load_dwordx4 {vr(QF)}, v{KA}, s[8:11], s45 offen
    ds_write_b128 v2, v[12:15]
    ds_write_b64 v3, v[12:13]
    ''')
    k(f'''
    v_and_b32 v2, 15, v1
    v_lshlrev_b32 v2, 4, v2
    v_lshrrev_b32 v3, 5, v1
    v_lshl_or_b32 v2, v3, 8, v2
    v_and_b32 v3, 16, v1
    v_cmp_eq_u32 vcc, 0, v3
    v_mov_b32 v3, {ONES}
    v_mov_b32 v11, 65536
    v_cndmask_b32 v3, v3, v11, vcc
    v_add_u32 v{VA}, v2, v3
    v_mov_b32 v11, 8192
    v_cndmask_b32 v{VI}, 0, v11, vcc
    s_mov_b32 s15, 8
    s_mov_b32 s47, 0
    s_mov_b32 s49, 7
    s_mov_b32 s48, {fbits(2.0**40)}
    ''')
    for r in list(range(X, X + 16)) + list(range(P + 4, P + 8)) + list(range(VF + 12, VF + 16)):
        k(f'v_mov_b32 v{r}, 0')
    k(f'''
    s_waitcnt vmcnt(0) lgkmcnt(0)
    ; @T 1
    s_barrier
    ; @T 2
    ds_read_b128 {vr(KF)}, v{KA}
    ds_read_b128 {vr(KF+4)}, v{KA} offset:1024
    ds_read_b128 {vr(VF)}, v{VA}
    ds_read_b128 {vr(VF+4)}, v{VA} offset:512
    s_waitcnt lgkmcnt(3)
    {MFMA} {vr(S+16,16)}, {vr(KF)}, {vr(QF)}, 0
    s_nop 11
    ''')
    def rowmax(dst, src, first):
        if first:
            k(f'v_max3_f32 v{dst}, v{src}, v{src+1}, v{src+2}')
            rest = list(range(src + 3, src + 16))
        else:
            rest = list(range(src, src + 16))
        while len(rest) >= 2:
            k(f'v_max3_f32 v{dst}, v{dst}, v{rest[0]}, v{rest[1]}')
            rest = rest[2:]
        if rest:
            k(f'v_max_f32 v{dst}, v{dst}, v{rest[0]}')
    rowmax(2, S + 16, True)
    k(f'''
    v_mov_b32 v3, v2
    s_nop 1
    v_permlane32_swap_b32 v2, v3
    v_max_f32 v2, v2, v3
    ''')
    for r in range(16):
        k(f'v_sub_f32 v{NEG+r}, 0, v2')
    k(f'''
    s_nop 1
    {MFMA} {vr(S,16)}, {vr(KF)}, {vr(QF)}, {vr(NEG,16)}
    s_nop 11
    ''')
    def slot(t):
        s = S + 16 * (t & 1); sn = S + 16 * ((t + 1) & 1)
        cur = Y if t < 4 else X
        prev = X if t < 4 else Y
        e = lambda i: k(f'v_exp_f32 v{s+i}, v{s+i}')
        c = lambda i: k(f'v_cvt_pk_bf16_f32 v{P+i}, v{s+2*i}, v{s+2*i+1}')
        a1 = prev if t % 4 == 0 else cur
        vprev = VF + 8 * ((t + 1) & 1)
        vcur = VF + 8 * (t & 1)
        e(0); e(1)
        k(f'{MFMA} {vr(a1,16)}, {vr(vprev+4)}, {vr(P+4)}, {vr(a1,16)}')
        k(f'ds_read_b128 {vr(vprev)}, v{VA} offset:{(t+1)*1024}')
        k(f'ds_read_b128 {vr(vprev+4)}, v{VA} offset:{(t+1)*1024+512}')
        e(2); e(3); e(4); e(5)
        k('s_waitcnt lgkmcnt(2)')
        k(f'{MFMA} {vr(sn,16)}, {vr(KF+4*((t+1)&1))}, {vr(QF)}, {vr(NEG,16)}')
        k(f'ds_read_b128 {vr(KF+4*(t&1))}, v{KA} offset:{(t+2)*1024}')
        e(6); e(7)
        c(0); c(1); c(2); c(3)
        e(8); e(9)
        if t % 4 == 0:
            k(f'v_cmp_lt_f32 vcc, s48, v{prev+8}')
            k(f's_cbranch_vccnz {name}_rare{t}')
            k.label(f'{name}_cont{t}')
            k(f'{MFMA} {vr(cur,16)}, {vr(vcur)}, {vr(P)}, {vr(prev,16)}')
        else:
            k(f'{MFMA} {vr(cur,16)}, {vr(vcur)}, {vr(P)}, {vr(cur,16)}')
        if t == 7:
            k(f'v_add_u32 v{KA}, 0x2000, v{KA}\nv_add_u32 v{VA}, v{VI}, v{VA}')
        for i in range(10, 16): e(i)
        if t == 7:
            k('s_sub_u32 s15, s15, 1\ns_cmp_lg_u32 s15, 0')
        for i in range(4, 8): c(i)
    k('; @T 3')
    k.label(f'{name}_loop')
    k(f's_cmp_eq_u32 s15, s49\ns_cbranch_scc1 {name}_sync')
    k.label(f'{name}_slot0')
    for t in range(8):
        if t == 4:
            k.label(f'{name}_slot4')
        slot(t)
    k(f's_cbranch_scc1 {name}_loop')
    k('; @T 6')
    k(f'''
    s_nop 0
    {MFMA} {vr(X,16)}, {vr(VF+12)}, {vr(P+4)}, {vr(X,16)}
    s_lshl_b32 s7, s43, 5
    s_add_u32 s7, s7, s42
    s_lshl_b32 s45, s7, 10
    v_lshlrev_b32 v2, 4, v1
    s_add_u32 s45, s45, {WS_O}
    s_nop 6
    v_cmp_lt_f32 vcc, s48, v{X+8}
    s_cbranch_vccnz {name}_rare8
    ''')
    k.label(f'{name}_cont8')
    k(f'v_rcp_f32 v3, v{X+8}\ns_nop 0')
    for i in range(8):
        k(f'v_mul_f32 v{X+i}, v{X+i}, v3')
    for i in range(4):
        k(f'v_cvt_pk_bf16_f32 v{P+i}, v{X+2*i}, v{X+2*i+1}')
    k(f'buffer_store_dwordx4 {vr(P)}, v2, s[8:11], s45 offen')
    k('s_endpgm')
    k.label(f'{name}_sync')
    k(f'''
    ; @T 4
    s_barrier
    ; @T 5
    s_mov_b32 s49, -1
    s_branch {name}_slot0
    ''')
    for t in (0, 4, 8):
        snap = X if t == 4 else Y
        base = 0 if t == 4 else 4
        k.label(f'{name}_rare{t}')
        k(f'''
        s_add_u32 s47, s47, 1
        s_cmp_gt_u32 s47, 64
        s_cbranch_scc1 {name}_cont{t}
        ''')
        if t != 4:
            k(f'''
            v_subrev_u32 v{KA}, 0x2000, v{KA}
            v_sub_u32 v{VA}, v{VA}, v{VI}
            s_add_u32 s15, s15, 1
            ''')
        k('s_waitcnt lgkmcnt(0)\ns_nop 11')
        for i in range(4):
            k(f'''
            ds_read_b128 {vr(KF)}, v{KA} offset:{(base+i)*1024}
            s_waitcnt lgkmcnt(0)
            {MFMA} {vr(S,16)}, {vr(KF)}, {vr(QF)}, {vr(NEG,16)}
            s_nop 11
            ''')
            rowmax(2, S, i == 0)
        k(f'''
        v_mov_b32 v3, v2
        s_nop 1
        v_permlane32_swap_b32 v2, v3
        v_max3_f32 v2, v2, v3, 0
        v_sub_f32 v3, 0, v2
        v_exp_f32 v3, v3
        ds_read_b128 {vr(KF)}, v{KA} offset:{base*1024}
        ds_read_b128 {vr(KF+4)}, v{KA} offset:{(base+1)*1024}
        ds_read_b128 {vr(VF)}, v{VA} offset:{base*1024}
        ds_read_b128 {vr(VF+4)}, v{VA} offset:{base*1024+512}
        ''')
        for r in range(16):
            k(f'v_mul_f32 v{snap+r}, v{snap+r}, v3')
            k(f'v_sub_f32 v{NEG+r}, v{NEG+r}, v2')
        for r in range(4):
            k(f'v_mov_b32 v{P+4+r}, 0')
        k(f'''
        s_waitcnt lgkmcnt(0)
        {MFMA} {vr(S,16)}, {vr(KF)}, {vr(QF)}, {vr(NEG,16)}
        s_nop 11
        s_branch {name}_slot{base}
        ''')
    tail(k)
    return k

def build(extra=()):
    ks = [ln_gemm('k1_qkv_kernel', 1), attention('k2_attn_kernel'), res_gemm('k3_wo_kernel', 3),
          ln_gemm('k4_ffn1_kernel', 4), res_gemm('k5_ffn2_kernel', 5)]
    bad = []
    for k in ks:
        bad += hazard.check(k.name, k.lines)
    for b in bad:
        print('HAZARD', b)
    return ks

if __name__ == '__main__':
    for o in sys.argv[2:]:
        kv = o.split('=')
        OPT[kv[0]] = int(kv[1]) if len(kv) > 1 else 1
    ks = build()
    hdr = '; generated by tools/gen2.py: LN+QKV, attention, Wo+residual, FFN1, FFN2+residual\n'
    out = sys.argv[1] if len(sys.argv) > 1 else 'sequential_preLN__softmax_full_mha__dense_activation_relu__prompt.s'
    open(out, 'w').write(emit(ks, hdr))
```

```python
import sys, struct, math
sys.path.insert(0, 'tools')
from asmlib import *
import hazard

MB = 1 << 20
WS_Q, WS_K, WS_V, WS_O, WS_H, WS_H1 = 0, 2 * MB, 4 * MB, 6 * MB, 8 * MB, 10 * MB
WS_ST = 17 * MB
WS_CS = 17 * MB + 512 * 1024
H1_SIZE = 2048 * 1792 * 2
E = 131072

def fbits(x):
    return '0x%08x' % struct.unpack('<I', struct.pack('<f', x))[0]

def vr(b, n=4):
    return f'v[{b}:{b+n-1}]'

MFMA = 'v_mfma_f32_32x32x16_bf16'
OPT = {}

def mix(k, mf, fill, per):
    fill = list(fill)
    for i, m in enumerate(mf):
        k(m)
        n = per[i] if isinstance(per, (list, tuple)) else per
        for _ in range(n):
            if fill: k(fill.pop(0))
    for f in fill: k(f)

def head(k, nwg, split, remap=''):
    k(f'''
    s_load_dwordx16 s[16:31], s[0:1], 0
    s_load_dwordx2 s[32:33], s[0:1], 64
    s_cmp_ge_u32 s2, {nwg}
    s_cbranch_scc1 {k.name}_end
    v_lshrrev_b32 v2, 6, v0
    v_and_b32 v1, 63, v0
    v_readfirstlane_b32 s3, v2
    s_and_b32 s40, s2, 7
    s_lshr_b32 s41, s2, 3
    {remap}
    s_cmp_ge_u32 s3, {split}
    s_cbranch_scc1 {k.name}_cons
    ''')

def tail(k):
    k.label(f'{k.name}_end')
    k('s_endpgm')

def w_addr(k, dst, tmp, cw=True):
    k(f'''
    v_and_b32 v{tmp}, 44, v1
    v_lshlrev_b32 v{dst}, 5, v{tmp}
    v_and_b32 v{tmp}, 16, v1
    v_lshl_or_b32 v{dst}, v{tmp}, 1, v{dst}
    v_and_b32 v{tmp}, 2, v1
    v_lshl_or_b32 v{dst}, v{tmp}, 2, v{dst}
    v_and_b32 v{tmp}, 1, v1
    v_lshl_or_b32 v{dst}, v{tmp}, 4, v{dst}
    v_and_b32 v{tmp}, 8, v1
    v_lshl_or_b32 v{dst}, v{tmp}, 3, v{dst}
    ''')
    if cw:
        k(f'''
        s_lshl_b32 s7, s5, 6
        v_xor_b32 v{dst}, s7, v{dst}
        ''')

def w_lane_part(k, dst, tmp, pitch):
    k(f'''
    v_lshrrev_b32 v{tmp}, 3, v1
    v_mul_u32_u24 v{dst}, {pitch}, v{tmp}
    v_and_b32 v{tmp}, 16, v1
    v_lshrrev_b32 v{tmp}, 2, v{tmp}
    v_xor_b32 v{tmp}, v{tmp}, v1
    v_and_b32 v{tmp}, 7, v{tmp}
    v_lshl_add_u32 v{dst}, v{tmp}, 4, v{dst}
    ''')

def vo_chain(k, vo, vx, sA, sB):
    for i in range(1, 8):
        s = sB if i == 4 else sA
        if vx is None:
            k(f'v_add_u32 v{vo+i}, s{s}, v{vo+i-1}')
        else:
            k(f'v_xad_u32 v{vo+i}, v{vo+i-1}, v{vx}, s{s}')

def dma_issue(k, vo):
    k('s_mov_b32 m0, s14')
    k('s_add_u32 s7, s14, 32768')
    for i in range(4):
        k(f'buffer_load_dwordx4 v{vo+i}, s[8:11], s12 offen offset:{i*1024} lds')
    k('s_add_u32 m0, s14, 4096')
    k('s_and_b32 s14, s7, 0x1ffff')
    for i in range(4):
        k(f'buffer_load_dwordx4 v{vo+4+i}, s[8:11], s12 offen offset:{i*1024} lds')
    k('s_add_u32 s12, s12, s13')

def srd(k, d, lo, hi, off, nrec):
    if off:
        k(f's_add_u32 s{d}, s{lo}, {off}\ns_addc_u32 s{d+1}, s{hi}, 0')
    else:
        k(f's_mov_b32 s{d}, s{lo}\ns_mov_b32 s{d+1}, s{hi}')
    k(f's_mov_b32 s{d+2}, {nrec}\ns_mov_b32 s{d+3}, 0x00020000')

def unpack8(k, dst, src):
    for i in range(4):
        k(f'v_lshlrev_b32 v{dst+2*i}, 16, v{src+i}')
        k(f'v_and_b32 v{dst+2*i+1}, 0xffff0000, v{src+i}')

def dma_half(k, vo, h):
    if h == 0:
        k('s_mov_b32 m0, s14')
        k('s_add_u32 s7, s14, 32768')
        for i in range(4):
            k(f'buffer_load_dwordx4 v{vo+i}, s[8:11], s12 offen offset:{i*1024} lds')
    else:
        k('s_add_u32 m0, s14, 4096')
        k('s_and_b32 s14, s7, 0x1ffff')
        for i in range(4):
            k(f'buffer_load_dwordx4 v{vo+4+i}, s[8:11], s12 offen offset:{i*1024} lds')
        k('s_add_u32 s12, s12, s13')

def loader_stream(k, vo, NC, D2, extra=None, nextra=0, pf=None, pfat=2):
    name = k.name
    k('; @T 1')
    k(f's_mov_b32 s15, 0')
    if OPT.get('lprio'): k('s_setprio 3')
    D = D2 // 2
    if D2 % 2 == 0:
        k.label(f'{name}_li')
        dma_half(k, vo, 0); dma_half(k, vo, 1)
        if OPT.get('lprio'): k('s_setprio 0')
        k('s_add_u32 s15, s15, 1')
        if pf:
            k(f's_cmp_eq_u32 s15, {pfat}\ns_cbranch_scc1 {name}_pf')
            k.label(f'{name}_pb')
        k(f'''
        s_cmp_lt_u32 s15, {D}
        s_cbranch_scc1 {name}_li
        s_cmp_eq_u32 s15, {NC}
        s_cbranch_scc1 {name}_lt
        ''')
    else:
        k(f's_branch {name}_la')
        k.label(f'{name}_li')
        dma_half(k, vo, 1)
        if OPT.get('lprio'): k('s_setprio 0')
        k(f'''
        s_add_u32 s15, s15, 1
        s_cmp_eq_u32 s15, {NC}
        s_cbranch_scc1 {name}_lt
        ''')
        k.label(f'{name}_la')
        dma_half(k, vo, 0)
        k(f'''
        s_cmp_lt_u32 s15, {D}
        s_cbranch_scc1 {name}_li
        ''')
    k(f'''
    s_waitcnt vmcnt({4*(D2-2)})
    ; @TI 2 s15 {D}
    s_barrier
    ; @TI 3 s15 {D}
    s_branch {name}_li
    ''')
    if pf:
        k.label(f'{name}_pf')
        pf()
        k(f's_branch {name}_pb')
    k.label(f'{name}_lt')
    k('; @T 4')
    if extra: extra()
    for c in range(D):
        k(f's_waitcnt vmcnt({8*(D-1-c)+nextra})\ns_barrier')
    k('; @T 5')

def stats_to_ops(k, sx, sxx, M, R, t):
    k(f'''
    v_mul_f32 v{sx}, {fbits(-1.0/512)}, v{sx}
    v_mul_f32 v{sxx}, {fbits(1.0/512)}, v{sxx}
    v_fma_f32 v{sxx}, -v{sx}, v{sx}, v{sxx}
    v_and_b32 v{t}, 0xffff0000, v{sx}
    v_max_f32 v{sxx}, 0, v{sxx}
    v_sub_f32 v{sx}, v{sx}, v{t}
    v_add_f32 v{sxx}, {fbits(1e-5)}, v{sxx}
    v_cndmask_b32 v{sx}, v{sx}, v{t}, vcc
    v_rsq_f32 v{R}, v{sxx}
    v_cvt_pk_bf16_f32 v{M}, v{sx}, v{sx}
    ''')

def split_op(c, t):
    return [f'v_and_b32 v{t}, 0xffff0000, v{c}', f'v_sub_f32 v{c}, v{c}, v{t}', f'v_cvt_pk_bf16_f32 v{c}, v{t}, v{c}']

def ln_gemm(name, which):
    K1 = which == 1
    nwg = 256 if K1 else 224
    TX, TW = (1, 3) if K1 else (2, 2)
    NACC = TX * TW
    D = OPT.get('d1', 6) if K1 else OPT.get('d4', 4)
    VO, XA, WA, ST, F, ACC = 8, 16, 20, 22, 32, 96
    k = Kernel(name, (nwg, 1, 1), (512, 1, 1), lds=E + 4096, vgpr=ACC + 16 * NACC, sgpr=64)
    remap = '''
    s_lshr_b32 s7, s40, 1
    s_lshl_b32 s7, s7, 3
    s_and_b32 s40, s40, 1
    s_lshl_b32 s40, s40, 2
    s_and_b32 s6, s41, 3
    s_add_u32 s40, s40, s6
    s_lshr_b32 s41, s41, 2
    s_add_u32 s41, s41, s7
    ''' if K1 and not OPT.get('nomap') else ''
    head(k, nwg, 4, remap)
    k('s_lshl_b32 s14, s3, 13')
    if K1:
        k(f'''
        s_cmp_eq_u32 s3, 0
        s_cbranch_scc1 {name}_rx
        ''')
        w_lane_part(k, VO, 2, 3072)
        k(f'''
        v_mov_b32 v5, 0
        s_movk_i32 s44, {24576-1024}
        s_movk_i32 s45, {24576+3072}
        s_mov_b32 s13, {64*3072}
        s_sub_u32 s12, s3, 1
        s_lshl_b32 s12, s12, 10
        s_lshl_b32 s7, s40, 7
        s_add_u32 s12, s12, s7
        s_mov_b32 s10, {512*1536*2}
        v_lshrrev_b32 v2, 2, v1
        v_mul_u32_u24 v6, 3072, v2
        v_and_b32 v2, 3, v1
        v_lshl_add_u32 v6, v2, 7, v6
        s_lshr_b32 s46, s2, 3
        s_mul_i32 s46, s46, {16*3072}
        s_and_b32 s7, s12, 0xe00
        s_add_u32 s46, s46, s7
        s_waitcnt lgkmcnt(0)
        s_mov_b32 s8, s18
        s_mov_b32 s9, s19
        s_branch {name}_rj
        ''')
        k.label(f'{name}_rx')
        k(f'''
        v_lshrrev_b32 v2, 3, v1
        v_lshlrev_b32 v{VO}, 10, v2
        v_lshrrev_b32 v2, 4, v1
        v_xor_b32 v2, v2, v1
        v_and_b32 v2, 7, v2
        v_lshl_add_u32 v{VO}, v2, 4, v{VO}
        v_mov_b32 v5, 64
        s_movk_i32 s44, {8192-1024}
        s_movk_i32 s45, {8192+3072}
        s_movk_i32 s13, 128
        s_lshl_b32 s12, s41, 16
        s_mov_b32 s10, {2048*512*2}
        v_lshlrev_b32 v6, 8, v1
        s_lshr_b32 s46, s2, 3
        s_lshl_b32 s46, s46, 14
        s_and_b32 s7, s12, 0x180000
        s_add_u32 s46, s46, s7
        s_waitcnt lgkmcnt(0)
        s_mov_b32 s8, s16
        s_mov_b32 s9, s17
        ''')
        k.label(f'{name}_rj')
        k('s_mov_b32 s11, 0x00020000')
        vo_chain(k, VO, 5, 44, 45)
        def pf():
            k(f'''
            buffer_load_dword v7, v6, s[8:11], s46 offen
            s_cmp_lg_u32 s3, 0
            s_cbranch_scc1 {name}_pb
            buffer_load_dword v7, v6, s[8:11], s46 offen offset:128
            ''')
        loader_stream(k, VO, 8, D, pf=None if OPT.get('nopf1') else pf, pfat=OPT.get('pfat', 2))
        k('s_endpgm')
    else:
        blk4 = '''
        s_cmp_ge_u32 s41, 14
        s_cselect_b32 s42, 1, 0
        s_cselect_b32 s7, 14, 0
        s_sub_u32 s43, s41, s7
        s_lshl_b32 s7, s40, 1
        s_add_u32 s42, s42, s7
        '''
        k(blk4)
        k(f'''
        v_lshlrev_b32 v6, 4, v1
        s_cmp_lt_u32 s3, 2
        s_cbranch_scc1 {name}_rx
        ''')
        w_lane_part(k, VO, 2, 3584)
        k(f'''
        s_movk_i32 s44, {8*3584-1024}
        s_movk_i32 s45, {8*3584+3072}
        s_mov_b32 s13, {64*3584}
        s_sub_u32 s12, s3, 2
        s_lshl_b32 s12, s12, 7
        s_lshl_b32 s7, s43, 8
        s_add_u32 s12, s12, s7
        s_mov_b32 s10, {512*1792*2}
        s_waitcnt lgkmcnt(0)
        s_mov_b32 s8, s24
        s_mov_b32 s9, s25
        s_branch {name}_rj
        ''')
        k.label(f'{name}_rx')
        k(f'''
        v_mov_b32 v{VO}, v6
        s_movk_i32 s44, 0
        s_mov_b32 s45, 32768
        s_movk_i32 s13, 4096
        s_lshl_b32 s12, s42, 17
        s_lshl_b32 s7, s3, 16
        s_add_u32 s12, s12, s7
        s_mov_b32 s10, {2*MB}
        s_waitcnt lgkmcnt(0)
        s_add_u32 s8, s32, {WS_H}
        s_addc_u32 s9, s33, 0
        ''')
        k.label(f'{name}_rj')
        k('s_mov_b32 s11, 0x00020000')
        vo_chain(k, VO, None, 44, 45)
        def extra():
            srd(k, 36, 32, 33, WS_ST, MB)
            k(f'''
            s_lshl_b32 s46, s42, 2
            s_add_u32 s46, s46, s3
            s_lshl_b32 s46, s46, 12
            s_lshl_b32 s47, s43, 2
            s_add_u32 s47, s47, s3
            s_lshl_b32 s47, s47, 9
            s_add_u32 s47, s47, {WS_CS-WS_ST}
            v_and_b32 v7, 0x1f0, v6
            ''')
            for q in range(4):
                k(f'buffer_load_dwordx4 {vr(16+4*q)}, v6, s[36:39], s46 offen offset:{q*1024}')
            k(f'buffer_load_dwordx4 {vr(32)}, v7, s[36:39], s47 offen')
        loader_stream(k, VO, 8, D, extra, 5)
        k(f'''
        v_cmp_gt_u32 vcc, 32, v1
        s_lshl_b32 s7, s3, 10
        s_add_u32 s7, s7, {E}
        v_add_u32 v6, s7, v6
        s_waitcnt vmcnt(0)
        ''')
        for q in range(1, 4):
            k(f'v_pk_add_f32 v[16:17], v[16:17], {vr(16+4*q,2)}\nv_pk_add_f32 v[18:19], v[18:19], {vr(18+4*q,2)}')
        k(f'''
        v_pk_add_f32 v[32:33], v[32:33], v[34:35]
        v_pk_add_f32 v[16:17], v[16:17], v[18:19]
        v_add_f32 v22, v32, v33
        v_add_f32 v16, v16, v17
        v_mov_b32 v17, v16
        ''')
        for s in split_op(22, 23): k(s)
        k('v_permlane32_swap_b32 v16, v17')
        stats_to_ops(k, 16, 17, 20, 21, 18)
        k(f'''
        s_nop 0
        ds_write_b96 v6, v[20:22]
        s_waitcnt lgkmcnt(0)
        s_barrier
        ; @T 6
        s_endpgm
        ''')
    k.label(f'{name}_cons')
    k('''
    s_and_b32 s4, s3, 1
    s_bfe_u32 s5, s3, 0x10001
    s_mov_b32 s34, 0x8000
    ''')
    w_addr(k, WA, 2)
    if K1:
        k(f'''
        s_xor_b32 s6, s4, s5
        s_mov_b32 s35, 0x3f803f80
        s_lshl_b32 s7, s6, 12
        v_add_u32 v{WA}, s7, v{WA}
        v_xor_b32 v{WA+1}, 0x1000, v{WA}
        v_lshrrev_b32 v2, 1, v1
        v_lshrrev_b32 v3, 5, v1
        v_xor_b32 v2, v2, v3
        v_and_b32 v2, 7, v2
        v_and_b32 v3, 31, v1
        v_lshlrev_b32 v3, 7, v3
        v_lshl_or_b32 v2, v2, 4, v3
        s_lshl_b32 s7, s4, 12
        s_lshl_b32 s42, s6, 6
        s_or_b32 s7, s7, s42
        v_xor_b32 v{XA}, s7, v2
        v_xor_b32 v{XA+1}, 32, v{XA}
        v_xor_b32 v{XA+2}, 64, v{XA}
        v_xor_b32 v{XA+3}, 0x60, v{XA}
        ''')
        zero = list(range(ST, ST + 6))
    else:
        k(blk4)
        k(f'''
        v_lshlrev_b32 v8, 4, v1
        s_lshl_b32 s7, s4, 13
        v_or_b32 v{XA}, s7, v8
        ''')
        zero = []
    for r in zero + list(range(F + 32, F + 64)) + list(range(ACC, ACC + 16 * NACC)):
        k(f'v_mov_b32 v{r}, 0')
    k('s_mov_b32 s15, 0')

    FX = lambda s, j: F + 16 * s + 4 * j
    FW = lambda s, p: F + 16 * s + 4 * TX + 4 * p
    nrd = TX + 2 * TW
    WBASE = 8192 if K1 else 16384
    def reads(s):
        o = []
        for j in range(TX):
            if K1:
                o.append(f'ds_read_b128 {vr(FX(s, j))}, v{XA+s}')
            else:
                o.append(f'ds_read_b128 {vr(FX(s, j))}, v{XA} offset:{j*4096+s*1024}')
        for p in range(TW):
            for sec in range(2):
                if K1:
                    o.append(f'ds_read_b64_tr_b16 {vr(FW(s, p)+2*sec, 2)}, v{WA+(s>>1)} offset:{WBASE+p*8192+(s&1)*2048+sec*512}')
                else:
                    o.append(f'ds_read_b64_tr_b16 {vr(FW(s, p)+2*sec, 2)}, v{WA} offset:{WBASE+p*8192+s*2048+sec*512}')
        return o
    def mf(s, j, p):
        a = ACC + 16 * (j * TW + p)
        if K1 and p == 2:
            return f'{MFMA} {vr(a,16)}, {vr(FX(s,j))}, {vr(FW(s,p))}, {vr(a,16)}'
        return f'{MFMA} {vr(a,16)}, {vr(FW(s,p))}, {vr(FX(s,j))}, {vr(a,16)}'
    def mfmas(s):
        return [mf(s, j, p) for j in range(TX) for p in range(TW)]
    def dots(s):
        for i in range(4):
            x = FX(s, 0) + i
            k(f'v_dot2c_f32_bf16 v{ST}, s35, v{x}')
            k(f'v_dot2c_f32_bf16 v{ST+1}, v{x}, v{x}')
            for p in range(TW):
                k(f'v_dot2c_f32_bf16 v{ST+2+p}, s35, v{FW(s,p)+i}')
    per = [3, 2, 2] if K1 else [2, 2, 2, 0]
    k('; @T 1')
    k.label(f'{name}_loop')
    k('s_barrier')
    k('; @TI 2 s15 0')
    k('; @TI 3 s15 4')
    r0 = reads(0)
    for x in r0[:3]: k(x)
    mix(k, mfmas(2), r0[3:] + reads(1)[:2], per)
    mix(k, mfmas(3), reads(1)[2:], per)
    k(f's_waitcnt lgkmcnt({nrd})')
    mix(k, mfmas(0), reads(2), per)
    if K1: dots(0)
    k(f's_waitcnt lgkmcnt({nrd})')
    if K1:
        upd = [f'v_xor_b32 v{r}, s34, v{r}' for r in list(range(XA, XA + 4)) + [WA, WA + 1]]
        mix(k, mfmas(1), reads(3), [4, 3, 0])
        for u in upd: k(u)
        k('s_xor_b32 s34, s34, 0x10000\ns_add_u32 s15, s15, 1\ns_cmp_lt_u32 s15, 8')
        dots(1)
    else:
        upd = [f'v_xor_b32 v{r}, s34, v{r}' for r in (XA, WA)] + ['s_xor_b32 s34, s34, 0x10000', 's_add_u32 s15, s15, 1', 's_cmp_lt_u32 s15, 8']
        mix(k, mfmas(1), reads(3) + upd, [3, 3, 5, 0])
    k('s_waitcnt lgkmcnt(0)')
    k(f's_cbranch_scc1 {name}_loop')
    k('; @T 4')
    if K1:
        pre = f'''v_and_b32 v3, 31, v1
        v_lshrrev_b32 v4, 5, v1
        v_lshlrev_b32 v5, 4, v3
        v_lshlrev_b32 v6, 5, v3
        v_permlane32_swap_b32 v{ST}, v{ST+1}
        v_permlane32_swap_b32 v{ST+2}, v{ST+3}
        v_permlane32_swap_b32 v{ST+4}, v{ST+5}
        s_lshl_b32 s7, s4, 9
        s_add_u32 s46, s7, {E}
        s_lshl_b32 s7, s5, 10
        s_add_u32 s47, s7, {E+1024}
        v_add_u32 v5, s46, v5
        v_add_u32 v6, s47, v6
        s_lshl_b32 s46, s5, 3
        s_lshl_b32 s47, s4, 4
        v_lshl_add_u32 v7, v4, 2, v5
        v_lshl_add_u32 v8, v4, 2, v6
        v_add_f32 v{ST}, v{ST}, v{ST+1}
        v_add_f32 v{ST+2}, v{ST+2}, v{ST+3}
        v_add_f32 v{ST+4}, v{ST+4}, v{ST+5}
        v_add_u32 v7, s46, v7
        v_add_u32 v8, s47, v8
        ds_write_b32 v7, v{ST}
        ds_write_b32 v8, v{ST+2}
        ds_write_b32 v8, v{ST+4} offset:8'''.split('\n')
        m2 = mfmas(2); m3 = mfmas(3)
        mix(k, m2[:2], pre, [12, 13])
        k('s_waitcnt lgkmcnt(0)\ns_barrier')
        k('; @T 5')
        k(f'''
        ds_read_b128 v[8:11], v5
        ds_read_b128 v[12:15], v6
        ds_read_b128 v[16:19], v6 offset:16
        ''')
        adr = f'''s_add_u32 s36, s32, 0
        s_addc_u32 s37, s33, 0
        s_mov_b32 s38, {6*MB}
        s_mov_b32 s39, 0x00020000
        s_lshl_b32 s7, s40, 2
        s_lshl_b32 s48, s5, 1
        s_add_u32 s7, s7, s48
        s_lshl_b32 s7, s7, 6
        s_lshl_b32 s48, s41, 1
        s_add_u32 s48, s48, s4
        s_add_u32 s7, s7, s48
        s_lshl_b32 s48, s7, 10
        s_add_u32 s49, s48, 0x10000
        s_add_u32 s50, s48, {WS_K}
        s_add_u32 s51, s48, {WS_K+0x10000}
        s_add_u32 s52, s48, {WS_V}
        s_lshl_b32 s53, s3, 7
        s_add_u32 s53, s53, {E+3072-512}
        v_lshlrev_b32 v2, 4, v1
        v_and_b32 v7, 16, v1
        v_lshlrev_b32 v7, 12, v7
        v_and_b32 v5, 15, v1
        v_lshl_or_b32 v7, v5, 4, v7
        v_lshl_or_b32 v7, v4, 8, v7
        v_lshl_add_u32 v5, v3, 2, s53
        v_lshl_add_u32 v6, v4, 4, s53
        v_cmp_gt_u32 vcc, 32, v1
        v_mov_b32 v21, 0
        v_mov_b32 v22, 0
        v_mov_b32 v23, 0
        v_mov_b32 v25, 0
        v_mov_b32 v27, 0
        v_mov_b32 v29, 0
        v_mov_b32 v30, 0
        v_mov_b32 v31, 0'''.split('\n')
        mix(k, [m2[2], m3[0]], adr, [18, 17])
        k(f'''
        s_waitcnt lgkmcnt(0)
        v_add_f32 v8, v8, v10
        v_add_f32 v10, v9, v11
        v_add_f32 v24, v12, v16
        v_add_f32 v26, v13, v17
        v_add_f32 v28, v14, v18
        ''')
        k(m3[1])
        stats_to_ops(k, 8, 10, 20, 9, 11)
        for s in split_op(24, 12): k(s)
        k(m3[2])
        k('ds_write_b32 v5, v9')
        for s in split_op(26, 13) + split_op(28, 14): k(s)
        k(f'{MFMA} {vr(ACC,16)}, v[24:27], v[20:23], {vr(ACC,16)}')
        k(f'v_mul_f32 v10, {fbits(0.25*math.log2(math.e))}, v9')
        k('s_waitcnt lgkmcnt(0)')
        for q in range(4):
            k(f'ds_read_b128 {vr(F+4*q)}, v6 offset:{q*32}')
        k(f'{MFMA} {vr(ACC+16,16)}, v[26:29], v[20:23], {vr(ACC+16,16)}')
        k(f'{MFMA} {vr(ACC+32,16)}, v[20:23], v[28:31], {vr(ACC+32,16)}')
        k('; @T 6')
        k('s_nop 3')
        k('v_mov_b32 v12, v9')
        for t, sc, so in ((0, 10, (48, 49)), (1, 12, (50, 51))):
            a = ACC + 16 * t; c = F + 16 + 8 * t
            for i in range(8):
                k(f'v_pk_mul_f32 {vr(a+2*i,2)}, {vr(a+2*i,2)}, {vr(sc,2)} op_sel_hi:[1,0]')
            for i in range(8):
                k(f'v_cvt_pk_bf16_f32 v{c+i}, v{a+2*i}, v{a+2*i+1}')
            for j in range(2):
                k(f'buffer_store_dwordx4 {vr(c+4*j)}, v2, s[36:39], s{so[j]} offen')
        a = ACC + 32
        k('s_waitcnt lgkmcnt(0)')
        for i in range(8):
            k(f'v_pk_mul_f32 {vr(a+2*i,2)}, {vr(a+2*i,2)}, {vr(F+2*i,2)}')
        for i in range(8):
            k(f'v_cvt_pk_bf16_f32 v{F+32+i}, v{a+2*i}, v{a+2*i+1}')
        for j in range(2):
            k(f'buffer_store_dwordx4 {vr(F+32+4*j)}, v7, s[36:39], s52 offen offset:{j*512}')
    else:
        k(f'''
        s_barrier
        ; @T 5
        s_lshl_b32 s7, s4, 11
        s_add_u32 s7, s7, {E}
        v_add_u32 v2, s7, v8
        s_lshl_b32 s7, s5, 10
        s_add_u32 s7, s7, {E+8}
        v_add_u32 v3, s7, v8
        ds_read_b64 v[10:11], v2
        ds_read_b64 v[12:13], v2 offset:1024
        ds_read_b32 v24, v3
        ds_read_b32 v26, v3 offset:2048
        ''')
        adr = f'''s_add_u32 s36, s32, {WS_H1}
        s_addc_u32 s37, s33, 0
        s_mov_b32 s38, {H1_SIZE}
        s_mov_b32 s39, 0x00020000
        s_lshl_b32 s7, s42, 2
        s_lshl_b32 s48, s4, 1
        s_add_u32 s7, s7, s48
        s_mul_i32 s7, s7, 112
        s_lshl_b32 s48, s43, 3
        s_add_u32 s7, s7, s48
        s_lshl_b32 s48, s5, 1
        s_add_u32 s7, s7, s48
        s_lshl_b32 s48, s7, 10
        s_add_u32 s49, s48, 4096
        s_add_u32 s50, s48, {112*1024}
        s_add_u32 s51, s48, {112*1024+4096}
        v_mov_b32 v17, 0
        v_mov_b32 v18, 0
        v_mov_b32 v19, 0
        v_mov_b32 v21, 0
        v_mov_b32 v22, 0
        v_mov_b32 v23, 0
        v_mov_b32 v25, 0
        v_mov_b32 v27, 0
        v_mov_b32 v28, 0
        v_mov_b32 v29, 0'''.split('\n')
        mix(k, mfmas(2), adr, [7, 7, 7, 5])
        k('s_waitcnt lgkmcnt(0)\nv_mov_b32 v16, v10\nv_mov_b32 v20, v12\nv_mov_b32 v10, v11\nv_mov_b32 v12, v13')
        def epi(t):
            j, p = t >> 1, t & 1
            a = ACC + 16 * t; o = F + 8 * t
            e = [f'v_mul_f32 v{a+i}, v{a+i}, v{10+2*j}' for i in range(16)]
            e2 = []
            for i in range(8):
                e2 += [e[2*i], e[2*i+1]]
            e2 += [f'v_cvt_pk_bf16_f32 v{o+i}, v{a+2*i}, v{a+2*i+1}' for i in range(8)]
            e2 += [f'v_pk_max_i16 v{o+i}, v{o+i}, 0' for i in range(8)]
            e2 += [f'buffer_store_dwordx4 {vr(o+4*jj)}, v8, s[36:39], s{48+2*j+p} offen offset:{jj*1024}' for jj in range(2)]
            return e2
        def fin(t):
            j, p = t >> 1, t & 1
            a = ACC + 16 * t
            return [mf(3, j, p), f'{MFMA} {vr(a,16)}, {vr(24+2*p)}, {vr(16+4*j)}, {vr(a,16)}']
        for m in fin(0) + fin(1): k(m)
        k('; @T 6')
        mix(k, fin(2) + fin(3), epi(0), [9, 9, 9, 7])
        for t in (1, 2, 3):
            for x in epi(t): k(x)
    k('; @T 7')
    tail(k)
    return k

def res_gemm(name, which):
    K3 = which == 3
    VO, XA, WA, RS, F, ACC = 8, 16, 17, 20, 32, 96
    NC = 4 if K3 else 14
    D = OPT.get('d3', 4) if K3 else OPT.get('d5', 5)
    k = Kernel(name, (256, 1, 1), (512, 1, 1), lds=E, vgpr=ACC + 16, sgpr=64)
    head(k, 256, 4)
    blk = '''
    s_lshr_b32 s42, s41, 3
    s_lshl_b32 s7, s40, 2
    s_add_u32 s42, s42, s7
    s_and_b32 s43, s41, 7
    '''
    k(blk)
    k(f'''
    s_lshl_b32 s14, s3, 13
    s_cmp_lt_u32 s3, 2
    s_cbranch_scc1 {name}_rx
    ''')
    w_lane_part(k, VO, 2, 1024)
    k(f'''
    s_movk_i32 s44, {8192-1024}
    s_movk_i32 s45, {8192+3072}
    s_mov_b32 s13, {128*1024}
    s_sub_u32 s12, s3, 2
    s_lshl_b32 s12, s12, 16
    s_lshl_b32 s7, s43, 7
    s_add_u32 s12, s12, s7
    s_mov_b32 s10, {512*512*2 if K3 else 1792*512*2}
    s_waitcnt lgkmcnt(0)
    s_mov_b32 s8, s{20 if K3 else 26}
    s_mov_b32 s9, s{21 if K3 else 27}
    s_branch {name}_rj
    ''')
    k.label(f'{name}_rx')
    k(f'''
    v_lshlrev_b32 v{VO}, 4, v1
    s_movk_i32 s44, 0
    s_movk_i32 s45, 4096
    s_movk_i32 s13, 8192
    s_lshl_b32 s12, s42, 1
    s_add_u32 s12, s12, s3
    s_mul_i32 s12, s12, {32768 if K3 else 112*1024}
    s_mov_b32 s10, {2*MB if K3 else H1_SIZE}
    s_waitcnt lgkmcnt(0)
    s_add_u32 s8, s32, {WS_O if K3 else WS_H1}
    s_addc_u32 s9, s33, 0
    ''')
    k.label(f'{name}_rj')
    k('s_mov_b32 s11, 0x00020000')
    vo_chain(k, VO, None, 44, 45)
    loader_stream(k, VO, NC, D)
    k('s_endpgm')
    k.label(f'{name}_cons')
    k(blk)
    k('''
    s_and_b32 s4, s3, 1
    s_bfe_u32 s5, s3, 0x10001
    s_mov_b32 s34, 0x8000
    ''')
    k(f'''
    v_lshlrev_b32 v7, 4, v1
    s_lshl_b32 s7, s4, 13
    v_or_b32 v{XA}, s7, v7
    v_and_b32 v2, 31, v1
    v_lshlrev_b32 v6, 10, v2
    v_lshrrev_b32 v2, 5, v1
    v_lshl_or_b32 v6, v2, 4, v6
    s_lshl_b32 s46, s42, 1
    s_add_u32 s46, s46, s4
    s_lshl_b32 s47, s43, 1
    s_add_u32 s47, s47, s5
    s_lshl_b32 s48, s46, 15
    s_lshl_b32 s7, s47, 6
    s_add_u32 s49, s48, s7
    s_lshl_b32 s7, s47, 11
    s_add_u32 s48, s48, s7
    s_waitcnt lgkmcnt(0)
    ''')
    if K3:
        srd(k, 36, 16, 17, 0, 2 * MB)
        for j in range(2):
            k(f'buffer_load_dwordx4 {vr(RS+4*j)}, v6, s[36:39], s49 offen offset:{j*32}')
    else:
        srd(k, 36, 32, 33, WS_H, 2 * MB)
        for j in range(2):
            k(f'buffer_load_dwordx4 {vr(RS+4*j)}, v7, s[36:39], s48 offen offset:{j*1024}')
    w_addr(k, WA, 2)
    if K3:
        srd(k, 36, 32, 33, WS_H, 10 * MB)
        k(f'''
        s_lshl_b32 s50, s46, 12
        s_lshr_b32 s7, s47, 2
        s_lshl_b32 s7, s7, 10
        s_add_u32 s50, s50, s7
        s_and_b32 s7, s47, 3
        s_lshl_b32 s7, s7, 2
        s_add_u32 s50, s50, s7
        s_add_u32 s50, s50, {WS_ST-WS_H}
        s_mov_b32 s35, 0x3f803f80
        v_mov_b32 v2, 0
        v_mov_b32 v3, 0
        ''')
    else:
        srd(k, 36, 28, 29, 0, 2 * MB)
    k('s_mov_b32 s15, 0')
    for i in range(16): k(f'v_mov_b32 v{ACC+i}, 0')
    k('; @T 1')
    def reads(s):
        k(f'ds_read_b128 {vr(F+8*s)}, v{XA} offset:{s*1024}')
        for sec in range(2):
            k(f'ds_read_b64_tr_b16 {vr(F+8*s+4+2*sec, 2)}, v{WA} offset:{16384+s*2048+sec*512}')
    k.label(f'{name}_loop')
    k('s_barrier')
    k('; @TI 2 s15 0')
    for s in range(4):
        reads(s)
    k(f's_cmp_eq_u32 s15, {3 if K3 else 6}\ns_cbranch_scc1 {name}_res')
    k.label(f'{name}_rb')
    for s in range(8):
        left = min(8, s + 4) - s - 1
        k(f's_waitcnt lgkmcnt({3*left})')
        k(f'{MFMA} {vr(ACC,16)}, {vr(F+8*s+4)}, {vr(F+8*s)}, {vr(ACC,16)}')
        if s + 4 < 8:
            reads(s + 4)
        if s == 4:
            k(f'v_xor_b32 v{XA}, s34, v{XA}\nv_xor_b32 v{WA}, s34, v{WA}\ns_xor_b32 s34, s34, 0x10000')
        if s == 5:
            k(f's_add_u32 s15, s15, 1\ns_cmp_lt_u32 s15, {NC}')
    k(f's_cbranch_scc1 {name}_loop')
    k('; @T 4')
    k('s_nop 10')
    for i in range(8):
        k(f'v_cvt_pk_bf16_f32 v{F+i}, v{ACC+2*i}, v{ACC+2*i+1}')
    for j in range(2):
        if K3:
            k(f'buffer_store_dwordx4 {vr(F+4*j)}, v7, s[36:39], s48 offen offset:{j*1024}')
        else:
            k(f'buffer_store_dwordx4 {vr(F+4*j)}, v6, s[36:39], s49 offen offset:{j*32}')
    if K3:
        for i in range(8):
            k(f'v_dot2c_f32_bf16 v2, s35, v{F+i}\nv_dot2c_f32_bf16 v3, v{F+i}, v{F+i}')
        k('''
        s_nop 2
        v_permlane32_swap_b32 v2, v3
        v_add_f32 v2, v2, v3
        buffer_store_dword v2, v7, s[36:39], s50 offen
        ''')
    k('; @T 7')
    k('s_endpgm')
    k.label(f'{name}_res')
    k('s_waitcnt vmcnt(0)')
    for i in range(8):
        k(f'v_lshlrev_b32 v4, 16, v{RS+i}\nv_and_b32 v5, 0xffff0000, v{RS+i}')
        k(f'v_add_f32 v{ACC+2*i}, v{ACC+2*i}, v4\nv_add_f32 v{ACC+2*i+1}, v{ACC+2*i+1}, v5')
    k(f's_nop 0\ns_branch {name}_rb')
    tail(k)
    return k

def attention(name):
    ONES = 131072
    CSB = ONES + 12288
    QF, KA, VA, VI = 4, 8, 9, 10
    KF, VF, P, S, NEG, X, Y = 16, 24, 40, 48, 80, 96, 112
    DUM = 12
    k = Kernel(name, (256, 1, 1), (768, 1, 1), lds=CSB + 16384, vgpr=128, sgpr=64)
    head(k, 256, 4)
    k(f'''
    s_lshr_b32 s42, s41, 3
    s_lshl_b32 s7, s40, 2
    s_add_u32 s42, s42, s7
    v_lshlrev_b32 v{KA}, 4, v1
    s_lshr_b32 s7, s3, 1
    s_and_b32 s46, s3, 1
    s_mul_i32 s47, s46, 5120
    s_lshl_b32 s14, s7, 16
    s_lshl_b32 s12, s42, 16
    s_and_b32 s13, s41, 7
    s_lshl_b32 s13, s13, 2
    s_add_u32 s13, s13, s3
    s_lshl_b32 s13, s13, 11
    s_add_u32 s13, s13, s12
    s_add_u32 s7, s7, 1
    s_lshl_b32 s7, s7, 21
    s_add_u32 s12, s12, s7
    s_lshl_b32 s7, s3, 11
    s_add_u32 m0, s7, {CSB}
    s_mov_b32 s10, {6*MB}
    s_mov_b32 s11, 0x00020000
    s_waitcnt lgkmcnt(0)
    s_mov_b32 s8, s32
    s_mov_b32 s9, s33
    ; @T 1
    buffer_load_dwordx4 v{KA}, s[8:11], s13 offen lds
    buffer_load_dwordx4 v{KA}, s[8:11], s13 offen offset:1024 lds
    s_add_u32 m0, s14, s47
    s_add_u32 s13, s12, s47
    ''')
    for i in range(4):
        k(f'buffer_load_dwordx4 v{KA}, s[8:11], s13 offen offset:{i*1024} lds')
    k(f's_add_u32 m0, m0, 4096\ns_add_u32 s13, s13, 4096')
    k(f's_mul_i32 s47, s46, {27*1024}\ns_add_u32 s47, s47, {10*1024}')
    k(f'buffer_load_dwordx4 v{KA}, s[8:11], s13 offen lds')
    k(f'''
    s_add_u32 m0, s14, s47
    s_add_u32 s13, s12, s47
    s_mov_b32 s15, 0
    ''')
    k.label(f'{name}_ll')
    for i in range(3):
        k(f'buffer_load_dwordx4 v{KA}, s[8:11], s13 offen offset:{i*1024} lds')
    k(f'''
    s_add_u32 m0, m0, 3072
    s_add_u32 s13, s13, 3072
    s_add_u32 s15, s15, 1
    s_cmp_lg_u32 s15, {OPT.get('a0', 2)}
    s_cbranch_scc1 {name}_l2
    s_waitcnt vmcnt({3*OPT.get('a0', 2)})
    ; @T 2
    s_barrier
    ''')
    k.label(f'{name}_l2')
    k(f'''
    s_cmp_lt_u32 s15, 9
    s_cbranch_scc1 {name}_ll
    ; @T 3
    s_waitcnt vmcnt(0)
    ; @T 4
    s_barrier
    ; @T 5
    ''')
    k(f'''
    s_cmp_lg_u32 s3, 0
    s_cbranch_scc1 {name}_pf
    s_cmp_ge_u32 s2, 112
    s_cbranch_scc1 {name}_pf
    ''')
    w_lane_part(k, 16, 2, 3584)
    srd(k, 36, 24, 25, 0, 512 * 1792 * 2)
    k(f'''
    s_and_b32 s44, s2, 3
    s_lshr_b32 s45, s2, 2
    s_mul_i32 s13, s44, {128*3584}
    s_lshl_b32 s7, s45, 7
    s_add_u32 s13, s13, s7
    s_mov_b32 m0, {CSB}
    s_mov_b32 s15, 0
    ''')
    k.label(f'{name}_c1')
    k(f'''
    buffer_load_dwordx4 v16, s[36:39], s13 offen lds
    s_add_u32 m0, m0, 1024
    s_add_u32 s13, s13, {8*3584}
    s_add_u32 s15, s15, 1
    s_cmp_lt_u32 s15, 16
    s_cbranch_scc1 {name}_c1
    ''')
    w_addr(k, 17, 2, cw=False)
    k(f'''
    v_add_u32 v17, {CSB}, v17
    v_xor_b32 v18, 64, v17
    v_mov_b32 v20, 0x3f803f80
    v_mov_b32 v21, v20
    v_mov_b32 v22, v20
    v_mov_b32 v23, v20
    ''')
    for r in range(32, 64): k(f'v_mov_b32 v{r}, 0')
    k('s_mov_b32 s15, 0\ns_waitcnt vmcnt(0)')
    k.label(f'{name}_c2')
    k(f'''
    ds_read_b64_tr_b16 v[24:25], v17
    ds_read_b64_tr_b16 v[26:27], v17 offset:512
    ds_read_b64_tr_b16 v[28:29], v18
    ds_read_b64_tr_b16 v[30:31], v18 offset:512
    v_add_u32 v17, 2048, v17
    v_add_u32 v18, 2048, v18
    s_add_u32 s15, s15, 1
    s_cmp_lt_u32 s15, 8
    s_waitcnt lgkmcnt(0)
    {MFMA} v[32:47], v[20:23], v[24:27], v[32:47]
    {MFMA} v[48:63], v[20:23], v[28:31], v[48:63]
    s_cbranch_scc1 {name}_c2
    ''')
    srd(k, 36, 32, 33, WS_CS, 56 * 512)
    k(f'''
    v_cmp_gt_u32 vcc, 32, v1
    s_lshl_b32 s13, s45, 10
    s_lshl_b32 s7, s44, 2
    s_add_u32 s13, s13, s7
    s_nop 7
    v_cndmask_b32 v2, v48, v32, vcc
    buffer_store_dword v2, v{KA}, s[36:39], s13 offen
    ''')
    k.label(f'{name}_pf')
    k(f'''
    s_lshl_b32 s7, s41, 2
    s_add_u32 s7, s7, s3
    s_mul_i32 s50, s7, 14336
    s_lshl_b32 s51, s7, 12
    s_lshl_b32 s52, s7, 11
    s_lshl_b32 s53, s40, 18
    s_add_u32 s52, s52, s53
    s_lshl_b32 s7, s2, 2
    s_add_u32 s7, s7, s3
    s_mul_i32 s53, s7, 1792
    ''')
    if not OPT.get('nopf'):
        srd(k, 36, 26, 27, 0, 1792 * 1024)
        for i in range(2):
            k(f'buffer_load_dwordx4 {vr(DUM)}, v{KA}, s[36:39], s53 offen offset:{i*1024}')
        srd(k, 36, 24, 25, 0, 1792 * 1024)
        for i in range(14):
            k(f'buffer_load_dwordx4 {vr(DUM)}, v{KA}, s[36:39], s50 offen offset:{(i%4)*1024}')
            if i % 4 == 3: k('s_add_u32 s50, s50, 4096')
        srd(k, 36, 20, 21, 0, 512 * 1024)
        for i in range(4):
            k(f'buffer_load_dwordx4 {vr(DUM)}, v{KA}, s[36:39], s51 offen offset:{i*1024}')
        srd(k, 36, 16, 17, 0, 2 * MB)
        for i in range(2):
            k(f'buffer_load_dwordx4 {vr(DUM)}, v{KA}, s[36:39], s52 offen offset:{i*1024}')
    k('s_waitcnt vmcnt(0)\n; @T 6\ns_endpgm')
    k.label(f'{name}_cons')
    k(f'''
    s_lshr_b32 s42, s41, 3
    s_lshl_b32 s7, s40, 2
    s_add_u32 s42, s42, s7
    s_and_b32 s43, s41, 7
    s_lshl_b32 s43, s43, 3
    s_add_u32 s43, s43, s3
    s_sub_u32 s43, s43, 4
    v_lshlrev_b32 v{KA}, 4, v1
    s_lshl_b32 s7, s3, 10
    s_add_u32 s7, s7, {CSB-4096}
    v_add_u32 v{QF}, s7, v{KA}
    s_mov_b32 s10, {8*MB}
    s_mov_b32 s11, 0x00020000
    v_mov_b32 v12, 0x3f803f80
    v_mov_b32 v13, v12
    v_mov_b32 v14, v12
    v_mov_b32 v15, v12
    v_lshlrev_b32 v2, 4, v0
    v_add_u32 v2, {ONES-4096}, v2
    v_lshlrev_b32 v3, 3, v0
    v_add_u32 v3, {ONES+8192-2048}, v3
    ds_write_b128 v2, v[12:15]
    ds_write_b64 v3, v[12:13]
    ''')
    k(f'''
    v_and_b32 v2, 15, v1
    v_lshlrev_b32 v2, 4, v2
    v_lshrrev_b32 v3, 5, v1
    v_lshl_or_b32 v2, v3, 8, v2
    v_and_b32 v3, 16, v1
    v_cmp_eq_u32 vcc, 0, v3
    v_mov_b32 v3, {ONES}
    v_mov_b32 v11, 65536
    v_cndmask_b32 v3, v3, v11, vcc
    v_add_u32 v{VA}, v2, v3
    v_mov_b32 v11, 8192
    v_cndmask_b32 v{VI}, 0, v11, vcc
    s_mov_b32 s15, 8
    s_mov_b32 s47, 0
    s_mov_b32 s49, 7
    s_mov_b32 s48, {fbits(2.0**40)}
    ''')
    for r in list(range(X, X + 16)) + list(range(P + 4, P + 8)) + list(range(VF + 12, VF + 16)):
        k(f'v_mov_b32 v{r}, 0')
    k(f'''
    s_waitcnt lgkmcnt(0)
    s_mov_b32 s8, s32
    s_mov_b32 s9, s33
    ; @T 1
    s_barrier
    ; @T 2
    ds_read_b128 {vr(QF)}, v{QF}
    ds_read_b128 {vr(KF)}, v{KA}
    ds_read_b128 {vr(KF+4)}, v{KA} offset:1024
    ds_read_b128 {vr(VF)}, v{VA}
    ds_read_b128 {vr(VF+4)}, v{VA} offset:512
    s_waitcnt lgkmcnt(3)
    {MFMA} {vr(S+16,16)}, {vr(KF)}, {vr(QF)}, 0
    s_nop 11
    ''')
    def rowmax(dst, src, first):
        if first:
            k(f'v_max3_f32 v{dst}, v{src}, v{src+1}, v{src+2}')
            rest = list(range(src + 3, src + 16))
        else:
            rest = list(range(src, src + 16))
        while len(rest) >= 2:
            k(f'v_max3_f32 v{dst}, v{dst}, v{rest[0]}, v{rest[1]}')
            rest = rest[2:]
        if rest:
            k(f'v_max_f32 v{dst}, v{dst}, v{rest[0]}')
    rowmax(2, S + 16, True)
    k(f'''
    v_mov_b32 v3, v2
    s_nop 1
    v_permlane32_swap_b32 v2, v3
    v_max_f32 v2, v2, v3
    ''')
    for r in range(16):
        k(f'v_sub_f32 v{NEG+r}, 0, v2')
    k(f'''
    s_nop 1
    {MFMA} {vr(S,16)}, {vr(KF)}, {vr(QF)}, {vr(NEG,16)}
    s_nop 11
    ''')
    def slot(t):
        s = S + 16 * (t & 1); sn = S + 16 * ((t + 1) & 1)
        cur = Y if t < 4 else X
        prev = X if t < 4 else Y
        e = lambda i: k(f'v_exp_f32 v{s+i}, v{s+i}')
        c = lambda i: k(f'v_cvt_pk_bf16_f32 v{P+i}, v{s+2*i}, v{s+2*i+1}')
        a1 = prev if t % 4 == 0 else cur
        vprev = VF + 8 * ((t + 1) & 1)
        vcur = VF + 8 * (t & 1)
        e(0); e(1)
        k(f'{MFMA} {vr(a1,16)}, {vr(vprev+4)}, {vr(P+4)}, {vr(a1,16)}')
        k(f'ds_read_b128 {vr(vprev)}, v{VA} offset:{(t+1)*1024}')
        k(f'ds_read_b128 {vr(vprev+4)}, v{VA} offset:{(t+1)*1024+512}')
        e(2); e(3); e(4); e(5)
        k('s_waitcnt lgkmcnt(2)')
        k(f'{MFMA} {vr(sn,16)}, {vr(KF+4*((t+1)&1))}, {vr(QF)}, {vr(NEG,16)}')
        k(f'ds_read_b128 {vr(KF+4*(t&1))}, v{KA} offset:{(t+2)*1024}')
        e(6); e(7)
        c(0); c(1); c(2); c(3)
        e(8); e(9)
        if t % 4 == 0:
            k(f'v_cmp_lt_f32 vcc, s48, v{prev+8}')
            k(f's_cbranch_vccnz {name}_rare{t}')
            k.label(f'{name}_cont{t}')
            k(f'{MFMA} {vr(cur,16)}, {vr(vcur)}, {vr(P)}, {vr(prev,16)}')
        else:
            k(f'{MFMA} {vr(cur,16)}, {vr(vcur)}, {vr(P)}, {vr(cur,16)}')
        if t == 7:
            k(f'v_add_u32 v{KA}, 0x2000, v{KA}\nv_add_u32 v{VA}, v{VI}, v{VA}')
        for i in range(10, 16): e(i)
        if t == 7:
            k('s_sub_u32 s15, s15, 1\ns_cmp_lg_u32 s15, 0')
        for i in range(4, 8): c(i)
    k('; @T 3')
    k.label(f'{name}_loop')
    k(f's_cmp_eq_u32 s15, s49\ns_cbranch_scc1 {name}_sync')
    k.label(f'{name}_slot0')
    for t in range(8):
        if t == 4:
            k.label(f'{name}_slot4')
        slot(t)
    k(f's_cbranch_scc1 {name}_loop')
    k('; @T 6')
    k(f'''
    s_nop 0
    {MFMA} {vr(X,16)}, {vr(VF+12)}, {vr(P+4)}, {vr(X,16)}
    s_lshl_b32 s7, s43, 5
    s_add_u32 s7, s7, s42
    s_lshl_b32 s45, s7, 10
    v_lshlrev_b32 v2, 4, v1
    s_add_u32 s45, s45, {WS_O}
    s_nop 6
    v_cmp_lt_f32 vcc, s48, v{X+8}
    s_cbranch_vccnz {name}_rare8
    ''')
    k.label(f'{name}_cont8')
    k(f'v_rcp_f32 v3, v{X+8}\ns_nop 0')
    for i in range(8):
        k(f'v_mul_f32 v{X+i}, v{X+i}, v3')
    for i in range(4):
        k(f'v_cvt_pk_bf16_f32 v{P+i}, v{X+2*i}, v{X+2*i+1}')
    k(f'buffer_store_dwordx4 {vr(P)}, v2, s[8:11], s45 offen')
    k('s_endpgm')
    k.label(f'{name}_sync')
    k(f'''
    s_setprio 0
    s_cmp_lg_u32 s49, 7
    s_mov_b32 s49, -1
    s_cbranch_scc1 {name}_slot0
    ; @T 4
    s_barrier
    ; @T 5
    s_cmp_lt_u32 s3, 8
    s_cbranch_scc1 {name}_slot0
    s_setprio {1 if OPT.get('bal', 1) >= 0 else 0}
    s_mov_b32 s49, {OPT.get('bal', 1)}
    s_branch {name}_slot0
    ''')
    for t in (0, 4, 8):
        snap = X if t == 4 else Y
        base = 0 if t == 4 else 4
        k.label(f'{name}_rare{t}')
        k(f'''
        s_add_u32 s47, s47, 1
        s_cmp_gt_u32 s47, 64
        s_cbranch_scc1 {name}_cont{t}
        ''')
        if t != 4:
            k(f'''
            v_subrev_u32 v{KA}, 0x2000, v{KA}
            v_sub_u32 v{VA}, v{VA}, v{VI}
            s_add_u32 s15, s15, 1
            ''')
        k('s_waitcnt lgkmcnt(0)\ns_nop 11')
        for i in range(4):
            k(f'''
            ds_read_b128 {vr(KF)}, v{KA} offset:{(base+i)*1024}
            s_waitcnt lgkmcnt(0)
            {MFMA} {vr(S,16)}, {vr(KF)}, {vr(QF)}, {vr(NEG,16)}
            s_nop 11
            ''')
            rowmax(2, S, i == 0)
        k(f'''
        v_mov_b32 v3, v2
        s_nop 1
        v_permlane32_swap_b32 v2, v3
        v_max3_f32 v2, v2, v3, 0
        v_sub_f32 v3, 0, v2
        v_exp_f32 v3, v3
        ds_read_b128 {vr(KF)}, v{KA} offset:{base*1024}
        ds_read_b128 {vr(KF+4)}, v{KA} offset:{(base+1)*1024}
        ds_read_b128 {vr(VF)}, v{VA} offset:{base*1024}
        ds_read_b128 {vr(VF+4)}, v{VA} offset:{base*1024+512}
        ''')
        for r in range(16):
            k(f'v_mul_f32 v{snap+r}, v{snap+r}, v3')
            k(f'v_sub_f32 v{NEG+r}, v{NEG+r}, v2')
        for r in range(4):
            k(f'v_mov_b32 v{P+4+r}, 0')
        k(f'''
        s_waitcnt lgkmcnt(0)
        {MFMA} {vr(S,16)}, {vr(KF)}, {vr(QF)}, {vr(NEG,16)}
        s_nop 11
        s_branch {name}_slot{base}
        ''')
    tail(k)
    return k

def build(extra=()):
    ks = [ln_gemm('k1_qkv_kernel', 1), attention('k2_attn_kernel'), res_gemm('k3_wo_kernel', 3),
          ln_gemm('k4_ffn1_kernel', 4), res_gemm('k5_ffn2_kernel', 5)]
    bad = []
    for k in ks:
        bad += hazard.check(k.name, k.lines)
    for b in bad:
        print('HAZARD', b)
    return ks

if __name__ == '__main__':
    for o in sys.argv[2:]:
        kv = o.split('=')
        OPT[kv[0]] = int(kv[1]) if len(kv) > 1 else 1
    ks = build()
    hdr = '; generated by tools/gen2.py: LN+QKV, attention, Wo+residual, FFN1, FFN2+residual\n'
    out = sys.argv[1] if len(sys.argv) > 1 else 'sequential_preLN__softmax_full_mha__dense_activation_relu__prompt.s'
    open(out, 'w').write(emit(ks, hdr))
```

```python
import sys, struct, math
sys.path.insert(0, 'tools')
from asmlib import *
import hazard

MB = 1 << 20
WS_Q, WS_K, WS_V, WS_O, WS_H, WS_H1 = 0, 2 * MB, 4 * MB, 6 * MB, 8 * MB, 10 * MB
WS_ST = 17 * MB
WS_CS = 17 * MB + 512 * 1024
WS_FL = 18 * MB
FL_HELLO, FL_1, FL_2, FL_3, FL_4, FL_C, FL_SIZE = 4096, 8192, 16384, 24576, 32768, 40960, 49152
EPOCH_STEP = 0x9e3779b9
SPIN = 200000
H1_SIZE = 2048 * 1792 * 2
ONES = 131072
CSB = ONES + 12288
E1 = CSB + 16384
MODE = E1 + 3840
E4 = 131072
RES = 160
NAME = 'sequential_preLN__softmax_full_mha__dense_activation_relu__prompt_kernel'

def fbits(x):
    return '0x%08x' % struct.unpack('<I', struct.pack('<f', x))[0]

def vr(b, n=4):
    return f'v[{b}:{b+n-1}]'

MFMA = 'v_mfma_f32_32x32x16_bf16'
OPT = {}

def mix(k, mf, fill, per):
    fill = list(fill)
    for i, m in enumerate(mf):
        k(m)
        n = per[i] if isinstance(per, (list, tuple)) else per
        for _ in range(n):
            if fill: k(fill.pop(0))
    for f in fill: k(f)

def w_addr(k, dst, tmp, cw=True):
    k(f'''
    v_and_b32 v{tmp}, 44, v1
    v_lshlrev_b32 v{dst}, 5, v{tmp}
    v_and_b32 v{tmp}, 16, v1
    v_lshl_or_b32 v{dst}, v{tmp}, 1, v{dst}
    v_and_b32 v{tmp}, 2, v1
    v_lshl_or_b32 v{dst}, v{tmp}, 2, v{dst}
    v_and_b32 v{tmp}, 1, v1
    v_lshl_or_b32 v{dst}, v{tmp}, 4, v{dst}
    v_and_b32 v{tmp}, 8, v1
    v_lshl_or_b32 v{dst}, v{tmp}, 3, v{dst}
    ''')
    if cw:
        k(f'''
        s_lshl_b32 s7, s5, 6
        v_xor_b32 v{dst}, s7, v{dst}
        ''')

def w_lane_part(k, dst, tmp, pitch):
    k(f'''
    v_lshrrev_b32 v{tmp}, 3, v1
    v_mul_u32_u24 v{dst}, {pitch}, v{tmp}
    v_and_b32 v{tmp}, 16, v1
    v_lshrrev_b32 v{tmp}, 2, v{tmp}
    v_xor_b32 v{tmp}, v{tmp}, v1
    v_and_b32 v{tmp}, 7, v{tmp}
    v_lshl_add_u32 v{dst}, v{tmp}, 4, v{dst}
    ''')

def vo_chain(k, vo, vx, sA, sB):
    for i in range(1, 8):
        s = sB if i == 4 else sA
        if vx is None:
            k(f'v_add_u32 v{vo+i}, s{s}, v{vo+i-1}')
        else:
            k(f'v_xad_u32 v{vo+i}, v{vo+i-1}, v{vx}, s{s}')

def srd(k, d, lo, hi, off, nrec):
    if off:
        k(f's_add_u32 s{d}, s{lo}, {off}\ns_addc_u32 s{d+1}, s{hi}, 0')
    else:
        k(f's_mov_b32 s{d}, s{lo}\ns_mov_b32 s{d+1}, s{hi}')
    k(f's_mov_b32 s{d+2}, {nrec}\ns_mov_b32 s{d+3}, 0x00020000')

def dma_half(k, vo, h, sc=''):
    if h == 0:
        k('s_mov_b32 m0, s14')
        k('s_add_u32 s7, s14, 32768')
        for i in range(4):
            k(f'buffer_load_dwordx4 v{vo+i}, s[8:11], s12 offen offset:{i*1024} {sc}lds')
    else:
        k('s_add_u32 m0, s14, 4096')
        k('s_and_b32 s14, s7, 0x1ffff')
        for i in range(4):
            k(f'buffer_load_dwordx4 v{vo+4+i}, s[8:11], s12 offen offset:{i*1024} {sc}lds')
        k('s_add_u32 s12, s12, s13')

def loader_stream(k, name, vo, NC, D2, extra=None, nextra=0, sc='', T=None):
    k(f's_mov_b32 s15, 0')
    D = D2 // 2
    if D2 % 2 == 0:
        k.label(f'{name}_li')
        dma_half(k, vo, 0, sc); dma_half(k, vo, 1, sc)
        k(f'''
        s_add_u32 s15, s15, 1
        s_cmp_lt_u32 s15, {D}
        s_cbranch_scc1 {name}_li
        s_cmp_eq_u32 s15, {NC}
        s_cbranch_scc1 {name}_lt
        ''')
    else:
        k(f's_branch {name}_la')
        k.label(f'{name}_li')
        dma_half(k, vo, 1, sc)
        k(f'''
        s_add_u32 s15, s15, 1
        s_cmp_eq_u32 s15, {NC}
        s_cbranch_scc1 {name}_lt
        ''')
        k.label(f'{name}_la')
        dma_half(k, vo, 0, sc)
        k(f'''
        s_cmp_lt_u32 s15, {D}
        s_cbranch_scc1 {name}_li
        ''')
    k(f's_waitcnt vmcnt({4*(D2-2)})')
    k('s_barrier')
    if T: k(f'; @TI {T} s15 {D}')
    k(f's_branch {name}_li')
    k.label(f'{name}_lt')
    if extra: extra()
    for c in range(D):
        k(f's_waitcnt vmcnt({8*(D-1-c)+nextra})\ns_barrier')

def w_stream(k, name, vo, NC, A, extra=None, nextra=0):
    k(f's_mov_b32 s15, 0')
    k.label(f'{name}_w0')
    dma_half(k, vo, 0); dma_half(k, vo, 1)
    k(f'''
    s_add_u32 s15, s15, 1
    s_cmp_lt_u32 s15, 4
    s_cbranch_scc1 {name}_w0
    ''')
    if NC > 4:
        for c in range(4 - A):
            k(f's_waitcnt vmcnt({8*(3-c)})\ns_barrier')
        k.label(f'{name}_w1')
        k(f's_waitcnt vmcnt({8*(A-1)})\ns_barrier')
        dma_half(k, vo, 0); dma_half(k, vo, 1)
        k(f'''
        s_add_u32 s15, s15, 1
        s_cmp_lt_u32 s15, {NC}
        s_cbranch_scc1 {name}_w1
        ''')
        D = A
    else:
        D = 4
    if extra: extra()
    for c in range(D):
        k(f's_waitcnt vmcnt({8*(D-1-c)+nextra})\ns_barrier')

def stats_to_ops(k, sx, sxx, M, R, t):
    k(f'''
    v_mul_f32 v{sx}, {fbits(-1.0/512)}, v{sx}
    v_mul_f32 v{sxx}, {fbits(1.0/512)}, v{sxx}
    v_fma_f32 v{sxx}, -v{sx}, v{sx}, v{sxx}
    v_and_b32 v{t}, 0xffff0000, v{sx}
    v_max_f32 v{sxx}, 0, v{sxx}
    v_sub_f32 v{sx}, v{sx}, v{t}
    v_add_f32 v{sxx}, {fbits(1e-5)}, v{sxx}
    v_cndmask_b32 v{sx}, v{sx}, v{t}, vcc
    v_rsq_f32 v{R}, v{sxx}
    v_cvt_pk_bf16_f32 v{M}, v{sx}, v{sx}
    ''')

def split_op(c, t):
    return [f'v_and_b32 v{t}, 0xffff0000, v{c}', f'v_sub_f32 v{c}, v{c}, v{t}', f'v_cvt_pk_bf16_f32 v{c}, v{t}, v{c}']

SIDE = []
def publish(k, name, vt, soff, local):
    k(f'v_mov_b32 v{vt}, s60')
    if local:
        k(f's_cmp_eq_u32 s61, 0')
        k('s_waitcnt vmcnt(0)')
        k(f's_cbranch_scc1 {name}_slow')
        k(f's_mov_b64 exec, 1\nbuffer_store_dword v{vt}, off, s[56:59], s{soff}\ns_mov_b64 exec, -1')
        k.label(f'{name}_pb')
        SIDE.append(f'''
        {name}_slow:
        buffer_wbl2 sc1
        s_waitcnt vmcnt(0)
        s_mov_b64 exec, 1
        buffer_store_dword v{vt}, off, s[56:59], s{soff} sc1
        s_mov_b64 exec, -1
        s_branch {name}_pb
        ''')
    else:
        k('s_waitcnt vmcnt(0)')
        k(f's_mov_b64 exec, 1\nbuffer_store_dword v{vt}, off, s[56:59], s{soff} sc1\ns_mov_b64 exec, -1')

def poll(k, name, va, vt, soff, local):
    k(f's_mov_b32 s62, {SPIN}')
    k.label(f'{name}_pl')
    k(f'''
    buffer_load_dword v{vt}, v{va}, s[56:59], s{soff} offen sc1
    s_sub_u32 s62, s62, 1
    s_waitcnt vmcnt(0)
    v_cmp_ne_u32 vcc, s60, v{vt}
    s_cbranch_scc1 {name}_pd
    s_cbranch_vccnz {name}_pl
    ''')
    k.label(f'{name}_pd')
    if local:
        k(f's_cmp_eq_u32 s61, 0\ns_cbranch_scc1 {name}_inv')
        k.label(f'{name}_ib')
        SIDE.append(f'''
        {name}_inv:
        buffer_inv sc1
        s_waitcnt vmcnt(0)
        s_branch {name}_ib
        ''')

def get_mode(k, v):
    k(f'''
    v_mov_b32 v{v}, {MODE}
    ds_read_b64 v[{v}:{v+1}], v{v}
    s_add_u32 s56, s32, {WS_FL}
    s_addc_u32 s57, s33, 0
    s_mov_b32 s58, {FL_SIZE}
    s_mov_b32 s59, 0x00020000
    s_waitcnt lgkmcnt(0)
    v_readfirstlane_b32 s60, v{v}
    v_readfirstlane_b32 s61, v{v+1}
    ''')

blk4 = '''
s_cmp_ge_u32 s41, 14
s_cselect_b32 s42, 1, 0
s_cselect_b32 s7, 14, 0
s_sub_u32 s43, s41, s7
s_lshl_b32 s7, s40, 1
s_add_u32 s42, s42, s7
'''
blk3 = '''
s_lshr_b32 s42, s41, 3
s_lshl_b32 s7, s40, 2
s_add_u32 s42, s42, s7
s_and_b32 s43, s41, 7
'''
VO = 8

def loaders(k):
    n = 'l1'
    k(f'''
    s_lshl_b32 s14, s3, 13
    s_cmp_eq_u32 s3, 0
    s_cbranch_scc1 {n}_rx
    ''')
    w_lane_part(k, VO, 2, 3072)
    k(f'''
    v_mov_b32 v5, 0
    s_movk_i32 s44, {24576-1024}
    s_movk_i32 s45, {24576+3072}
    s_mov_b32 s13, {64*3072}
    s_sub_u32 s12, s3, 1
    s_lshl_b32 s12, s12, 10
    s_lshl_b32 s7, s40, 7
    s_add_u32 s12, s12, s7
    s_mov_b32 s10, {512*1536*2}
    s_waitcnt lgkmcnt(0)
    s_mov_b32 s8, s18
    s_mov_b32 s9, s19
    s_branch {n}_rj
    ''')
    k.label(f'{n}_rx')
    k(f'''
    v_lshrrev_b32 v2, 3, v1
    v_lshlrev_b32 v{VO}, 10, v2
    v_lshrrev_b32 v2, 4, v1
    v_xor_b32 v2, v2, v1
    v_and_b32 v2, 7, v2
    v_lshl_add_u32 v{VO}, v2, 4, v{VO}
    v_mov_b32 v5, 64
    s_movk_i32 s44, {8192-1024}
    s_movk_i32 s45, {8192+3072}
    s_movk_i32 s13, 128
    s_lshl_b32 s12, s41, 16
    s_mov_b32 s10, {2048*512*2}
    s_waitcnt lgkmcnt(0)
    s_mov_b32 s8, s16
    s_mov_b32 s9, s17
    ''')
    k.label(f'{n}_rj')
    k('s_mov_b32 s11, 0x00020000')
    vo_chain(k, VO, 5, 44, 45)
    k('; @T 1')
    loader_stream(k, n, VO, 8, OPT.get('d1', 6), T=2)
    n = 'l2'
    KA, DUM = 8, 12
    k(f'''
    s_lshr_b32 s42, s41, 3
    s_lshl_b32 s7, s40, 2
    s_add_u32 s42, s42, s7
    v_lshlrev_b32 v{KA}, 4, v1
    v_lshlrev_b32 v9, 2, v1
    s_lshr_b32 s7, s3, 1
    s_and_b32 s46, s3, 1
    s_mul_i32 s47, s46, 5120
    s_lshl_b32 s14, s7, 16
    s_lshl_b32 s12, s42, 16
    s_and_b32 s13, s41, 7
    s_lshl_b32 s13, s13, 2
    s_add_u32 s13, s13, s3
    s_lshl_b32 s13, s13, 11
    s_add_u32 s13, s13, s12
    s_add_u32 s7, s7, 1
    s_lshl_b32 s7, s7, 21
    s_add_u32 s12, s12, s7
    s_lshl_b32 s7, s3, 11
    s_add_u32 m0, s7, {CSB}
    s_mov_b32 s10, {6*MB}
    s_mov_b32 s8, s32
    s_mov_b32 s9, s33
    s_lshr_b32 s48, s42, 1
    s_lshl_b32 s48, s48, 8
    s_add_u32 s48, s48, {FL_1}
    s_barrier
    ; @T 3
    ''')
    get_mode(k, 10)
    poll(k, n, 9, 10, 48, True)
    k(f'''
    ; @T 4
    buffer_load_dwordx4 v{KA}, s[8:11], s13 offen sc1 lds
    buffer_load_dwordx4 v{KA}, s[8:11], s13 offen offset:1024 sc1 lds
    s_add_u32 m0, s14, s47
    s_add_u32 s13, s12, s47
    ''')
    for i in range(4):
        k(f'buffer_load_dwordx4 v{KA}, s[8:11], s13 offen offset:{i*1024} sc1 lds')
    k(f's_add_u32 m0, m0, 4096\ns_add_u32 s13, s13, 4096')
    k(f's_mul_i32 s47, s46, {27*1024}\ns_add_u32 s47, s47, {10*1024}')
    k(f'buffer_load_dwordx4 v{KA}, s[8:11], s13 offen sc1 lds')
    k(f'''
    s_add_u32 m0, s14, s47
    s_add_u32 s13, s12, s47
    s_mov_b32 s15, 0
    ''')
    k.label(f'{n}_ll')
    for i in range(3):
        k(f'buffer_load_dwordx4 v{KA}, s[8:11], s13 offen offset:{i*1024} sc1 lds')
    k(f'''
    s_add_u32 m0, m0, 3072
    s_add_u32 s13, s13, 3072
    s_add_u32 s15, s15, 1
    s_cmp_lg_u32 s15, {OPT.get('a0', 2)}
    s_cbranch_scc1 {n}_l2
    s_waitcnt vmcnt({3*OPT.get('a0', 2)})
    s_barrier
    ; @T 5
    ''')
    k.label(f'{n}_l2')
    k(f'''
    s_cmp_lt_u32 s15, 9
    s_cbranch_scc1 {n}_ll
    s_waitcnt vmcnt(0)
    s_barrier
    ; @T 6
    ''')
    k(f'''
    s_cmp_lg_u32 s3, 0
    s_cbranch_scc1 {n}_pf
    s_cmp_ge_u32 s2, 112
    s_cbranch_scc1 {n}_pf
    ''')
    w_lane_part(k, 16, 2, 3584)
    srd(k, 36, 24, 25, 0, 512 * 1792 * 2)
    k(f'''
    s_and_b32 s44, s2, 3
    s_lshr_b32 s45, s2, 2
    s_mul_i32 s13, s44, {128*3584}
    s_lshl_b32 s7, s45, 7
    s_add_u32 s13, s13, s7
    s_mov_b32 m0, {CSB}
    s_mov_b32 s15, 0
    ''')
    k.label(f'{n}_c1')
    k(f'''
    buffer_load_dwordx4 v16, s[36:39], s13 offen lds
    s_add_u32 m0, m0, 1024
    s_add_u32 s13, s13, {8*3584}
    s_add_u32 s15, s15, 1
    s_cmp_lt_u32 s15, 16
    s_cbranch_scc1 {n}_c1
    ''')
    w_addr(k, 17, 2, cw=False)
    k(f'''
    v_add_u32 v17, {CSB}, v17
    v_xor_b32 v18, 64, v17
    v_mov_b32 v20, 0x3f803f80
    v_mov_b32 v21, v20
    v_mov_b32 v22, v20
    v_mov_b32 v23, v20
    ''')
    for r in range(32, 64): k(f'v_mov_b32 v{r}, 0')
    k('s_mov_b32 s15, 0\ns_waitcnt vmcnt(0)')
    k.label(f'{n}_c2')
    k(f'''
    ds_read_b64_tr_b16 v[24:25], v17
    ds_read_b64_tr_b16 v[26:27], v17 offset:512
    ds_read_b64_tr_b16 v[28:29], v18
    ds_read_b64_tr_b16 v[30:31], v18 offset:512
    v_add_u32 v17, 2048, v17
    v_add_u32 v18, 2048, v18
    s_add_u32 s15, s15, 1
    s_cmp_lt_u32 s15, 8
    s_waitcnt lgkmcnt(0)
    {MFMA} v[32:47], v[20:23], v[24:27], v[32:47]
    {MFMA} v[48:63], v[20:23], v[28:31], v[48:63]
    s_cbranch_scc1 {n}_c2
    ''')
    srd(k, 36, 32, 33, WS_CS, 56 * 512)
    k(f'''
    v_cmp_gt_u32 vcc, 32, v1
    s_lshl_b32 s13, s45, 10
    s_lshl_b32 s7, s44, 2
    s_add_u32 s13, s13, s7
    s_lshl_b32 s48, s2, 2
    s_add_u32 s48, s48, {FL_C}
    s_nop 5
    v_cndmask_b32 v2, v48, v32, vcc
    buffer_store_dword v2, v{KA}, s[36:39], s13 offen sc1
    ''')
    publish(k, f'{n}c', 3, 48, False)
    k.label(f'{n}_pf')
    k(f'''
    s_lshl_b32 s7, s41, 2
    s_add_u32 s7, s7, s3
    s_mul_i32 s50, s7, 14336
    s_lshl_b32 s51, s7, 12
    s_lshl_b32 s7, s2, 2
    s_add_u32 s7, s7, s3
    s_mul_i32 s53, s7, 1792
    ''')
    if not OPT.get('nopf'):
        srd(k, 36, 26, 27, 0, 1792 * 1024)
        for i in range(2):
            k(f'buffer_load_dwordx4 {vr(DUM)}, v{KA}, s[36:39], s53 offen offset:{i*1024}')
        srd(k, 36, 24, 25, 0, 1792 * 1024)
        for i in range(14):
            k(f'buffer_load_dwordx4 {vr(DUM)}, v{KA}, s[36:39], s50 offen offset:{(i%4)*1024}')
            if i % 4 == 3: k('s_add_u32 s50, s50, 4096')
        srd(k, 36, 20, 21, 0, 512 * 1024)
        for i in range(4):
            k(f'buffer_load_dwordx4 {vr(DUM)}, v{KA}, s[36:39], s51 offen offset:{i*1024}')
    k('s_waitcnt vmcnt(0)\n; @T 7')
    k('s_cmp_ge_u32 s3, 2\ns_cbranch_scc1 lw3')
    def res_x(K3):
        k(blk3)
        k(f'''
        s_lshl_b32 s14, s3, 13
        v_lshlrev_b32 v{VO}, 4, v1
        s_movk_i32 s44, 0
        s_movk_i32 s45, 4096
        s_movk_i32 s13, 8192
        s_lshl_b32 s12, s42, 1
        s_add_u32 s12, s12, s3
        s_mul_i32 s12, s12, {32768 if K3 else 112*1024}
        s_mov_b32 s10, {2*MB if K3 else H1_SIZE}
        s_add_u32 s8, s32, {WS_O if K3 else WS_H1}
        s_addc_u32 s9, s33, 0
        ''')
        vo_chain(k, VO, None, 44, 45)
    def res_w(K3):
        k(blk3)
        w_lane_part(k, VO, 2, 1024)
        k(f'''
        s_lshl_b32 s14, s3, 13
        s_movk_i32 s44, {8192-1024}
        s_movk_i32 s45, {8192+3072}
        s_mov_b32 s13, {128*1024}
        s_sub_u32 s12, s3, 2
        s_lshl_b32 s12, s12, 16
        s_lshl_b32 s7, s43, 7
        s_add_u32 s12, s12, s7
        s_mov_b32 s10, {512*512*2 if K3 else 1792*512*2}
        s_mov_b32 s8, s{20 if K3 else 26}
        s_mov_b32 s9, s{21 if K3 else 27}
        ''')
        vo_chain(k, VO, None, 44, 45)
    def cs_part(n):
        k(f'''
        v_lshlrev_b32 v6, 4, v1
        v_and_b32 v7, 7, v1
        v_lshlrev_b32 v7, 2, v7
        s_lshl_b32 s48, s43, 5
        s_add_u32 s48, s48, {FL_C}
        ''')
        poll(k, n, 7, 5, 48, False)
        srd(k, 36, 32, 33, WS_ST, MB)
        k(f'''
        s_lshl_b32 s46, s42, 2
        s_add_u32 s46, s46, s3
        s_lshl_b32 s46, s46, 12
        s_lshl_b32 s47, s43, 2
        s_add_u32 s47, s47, s3
        s_lshl_b32 s47, s47, 9
        s_add_u32 s47, s47, {WS_CS-WS_ST}
        v_and_b32 v7, 0x1f0, v6
        buffer_load_dwordx4 {vr(32)}, v7, s[36:39], s47 offen sc1
        ''')
    def extra4():
        for q in range(4):
            k(f'buffer_load_dwordx4 {vr(16+4*q)}, v6, s[36:39], s46 offen offset:{q*1024} sc1')
    res_x(True)
    k(f'''
    v_lshlrev_b32 v5, 2, v1
    s_lshl_b32 s48, s42, 8
    s_add_u32 s48, s48, {FL_2}
    s_barrier
    ; @T 8
    ''')
    poll(k, 'lx3', 5, 6, 48, False)
    k('; @T 9')
    k(f'''
    s_or_b32 s7, s2, s3
    s_cbranch_scc0 lx3_ep
    ''')
    k.label('lx3_eb')
    SIDE.append(f'''
    lx3_ep:
    v_mov_b32 v6, s60
    s_mov_b64 exec, 1
    buffer_store_dword v6, off, s[56:59], 0
    s_mov_b64 exec, -1
    s_waitcnt vmcnt(0)
    s_branch lx3_eb
    ''')
    loader_stream(k, 'lx3', VO, 4, OPT.get('d3', 8), sc='sc1 ')
    k('s_cmp_ge_u32 s41, 28\ns_cbranch_scc1 lx4_skip')
    k(blk4)
    cs_part('lx4c')
    k(f'''
    v_mov_b32 v{VO}, v6
    s_lshl_b32 s14, s3, 13
    s_movk_i32 s44, 0
    s_mov_b32 s45, 32768
    s_movk_i32 s13, 4096
    s_lshl_b32 s12, s42, 17
    s_lshl_b32 s7, s3, 16
    s_add_u32 s12, s12, s7
    s_mov_b32 s10, {2*MB}
    s_add_u32 s8, s32, {WS_H}
    s_addc_u32 s9, s33, 0
    v_lshlrev_b32 v5, 2, v1
    s_lshl_b32 s48, s42, 8
    s_add_u32 s48, s48, {FL_3}
    ''')
    vo_chain(k, VO, None, 44, 45)
    k('s_barrier\n; @T 10')
    poll(k, 'lx4', 5, 7, 48, True)
    k('; @T 11')
    loader_stream(k, 'lx4', VO, 8, OPT.get('d4', 4), extra4, 4, sc='sc1 ')
    k('s_branch l4_st')
    k.label('lx4_skip')
    k('s_barrier')
    k.label('lx5')
    res_x(False)
    k(f'''
    v_min_u32 v5, 27, v1
    v_lshlrev_b32 v5, 2, v5
    s_lshl_b32 s48, s42, 7
    s_add_u32 s48, s48, {FL_4}
    s_cmp_ge_u32 s41, 28
    s_cbranch_scc1 lx5_nb
    s_barrier
    ''')
    k.label('lx5_nb')
    k('; @T 13')
    poll(k, 'lx5', 5, 6, 48, True)
    k('; @T 14')
    loader_stream(k, 'lx5', VO, 14, OPT.get('d5', 5), sc='sc1 ')
    k('s_endpgm')
    k.label('lw3')
    res_w(True)
    k('s_barrier\n; @T 8')
    w_stream(k, 'lw3', VO, 4, 3)
    k('s_cmp_ge_u32 s41, 28\ns_cbranch_scc1 lw4_skip')
    k(blk4)
    cs_part('lw4c')
    w_lane_part(k, VO, 2, 3584)
    k(f'''
    s_lshl_b32 s14, s3, 13
    s_movk_i32 s44, {8*3584-1024}
    s_movk_i32 s45, {8*3584+3072}
    s_mov_b32 s13, {64*3584}
    s_sub_u32 s12, s3, 2
    s_lshl_b32 s12, s12, 7
    s_lshl_b32 s7, s43, 8
    s_add_u32 s12, s12, s7
    s_mov_b32 s10, {512*1792*2}
    s_mov_b32 s8, s24
    s_mov_b32 s9, s25
    ''')
    vo_chain(k, VO, None, 44, 45)
    k('s_barrier\n; @T 10')
    w_stream(k, 'lw4', VO, 8, OPT.get('a4', 2), extra4, 4)
    k.label('l4_st')
    k(f'''
    v_cmp_gt_u32 vcc, 32, v1
    s_lshl_b32 s7, s3, 10
    s_add_u32 s7, s7, {E4}
    v_add_u32 v6, s7, v6
    s_waitcnt vmcnt(0)
    ''')
    for q in range(1, 4):
        k(f'v_pk_add_f32 v[16:17], v[16:17], {vr(16+4*q,2)}\nv_pk_add_f32 v[18:19], v[18:19], {vr(18+4*q,2)}')
    k(f'''
    v_pk_add_f32 v[32:33], v[32:33], v[34:35]
    v_pk_add_f32 v[16:17], v[16:17], v[18:19]
    v_add_f32 v22, v32, v33
    v_add_f32 v16, v16, v17
    v_mov_b32 v17, v16
    ''')
    for s in split_op(22, 23): k(s)
    k('v_permlane32_swap_b32 v16, v17')
    stats_to_ops(k, 16, 17, 20, 21, 18)
    k(f'''
    s_nop 0
    ds_write_b96 v6, v[20:22]
    s_cmp_lt_u32 s3, 2
    s_waitcnt lgkmcnt(0)
    s_barrier
    ; @T 12
    s_cbranch_scc1 lx5
    s_branch lw5
    ''')
    k.label('lw4_skip')
    k('s_barrier')
    k.label('lw5')
    res_w(False)
    k(f'''
    s_cmp_ge_u32 s41, 28
    s_cbranch_scc1 lw5_nb
    s_barrier
    ''')
    k.label('lw5_nb')
    k('; @T 13')
    w_stream(k, 'lw5', VO, 14, OPT.get('a5', 2))
    k('s_endpgm')

def ln_cons(k, K1):
    name = 'c1' if K1 else 'c4'
    TX, TW = (1, 3) if K1 else (2, 2)
    NACC = TX * TW
    XA, WA, ST, F, ACC = 16, 20, 22, 32, 96
    E = E1 if K1 else E4
    k('''
    s_and_b32 s4, s3, 1
    s_bfe_u32 s5, s3, 0x10001
    s_mov_b32 s34, 0x8000
    ''')
    w_addr(k, WA, 2)
    if K1:
        k(f'''
        s_xor_b32 s6, s4, s5
        s_mov_b32 s35, 0x3f803f80
        s_lshl_b32 s7, s6, 12
        v_add_u32 v{WA}, s7, v{WA}
        v_xor_b32 v{WA+1}, 0x1000, v{WA}
        v_lshrrev_b32 v2, 1, v1
        v_lshrrev_b32 v3, 5, v1
        v_xor_b32 v2, v2, v3
        v_and_b32 v2, 7, v2
        v_and_b32 v3, 31, v1
        v_lshlrev_b32 v3, 7, v3
        v_lshl_or_b32 v2, v2, 4, v3
        s_lshl_b32 s7, s4, 12
        s_lshl_b32 s42, s6, 6
        s_or_b32 s7, s7, s42
        v_xor_b32 v{XA}, s7, v2
        v_xor_b32 v{XA+1}, 32, v{XA}
        v_xor_b32 v{XA+2}, 64, v{XA}
        v_xor_b32 v{XA+3}, 0x60, v{XA}
        ''')
        zero = list(range(ST, ST + 6))
    else:
        k(blk4)
        k(f'''
        v_lshlrev_b32 v8, 4, v1
        s_lshl_b32 s7, s4, 13
        v_or_b32 v{XA}, s7, v8
        ''')
        zero = []
    for r in zero + list(range(F + 32, F + 64)) + list(range(ACC, ACC + 16 * NACC)):
        k(f'v_mov_b32 v{r}, 0')
    k('s_mov_b32 s15, 0')
    if not K1:
        publish(k, 'c3', 2, 54, True)
        k('; @T 11')

    FX = lambda s, j: F + 16 * s + 4 * j
    FW = lambda s, p: F + 16 * s + 4 * TX + 4 * p
    nrd = TX + 2 * TW
    WBASE = 8192 if K1 else 16384
    def reads(s):
        o = []
        for j in range(TX):
            if K1:
                o.append(f'ds_read_b128 {vr(FX(s, j))}, v{XA+s}')
            else:
                o.append(f'ds_read_b128 {vr(FX(s, j))}, v{XA} offset:{j*4096+s*1024}')
        for p in range(TW):
            for sec in range(2):
                if K1:
                    o.append(f'ds_read_b64_tr_b16 {vr(FW(s, p)+2*sec, 2)}, v{WA+(s>>1)} offset:{WBASE+p*8192+(s&1)*2048+sec*512}')
                else:
                    o.append(f'ds_read_b64_tr_b16 {vr(FW(s, p)+2*sec, 2)}, v{WA} offset:{WBASE+p*8192+s*2048+sec*512}')
        return o
    def mf(s, j, p):
        a = ACC + 16 * (j * TW + p)
        if K1 and p == 2:
            return f'{MFMA} {vr(a,16)}, {vr(FX(s,j))}, {vr(FW(s,p))}, {vr(a,16)}'
        return f'{MFMA} {vr(a,16)}, {vr(FW(s,p))}, {vr(FX(s,j))}, {vr(a,16)}'
    def mfmas(s):
        return [mf(s, j, p) for j in range(TX) for p in range(TW)]
    def dots(s):
        for i in range(4):
            x = FX(s, 0) + i
            k(f'v_dot2c_f32_bf16 v{ST}, s35, v{x}')
            k(f'v_dot2c_f32_bf16 v{ST+1}, v{x}, v{x}')
            for p in range(TW):
                k(f'v_dot2c_f32_bf16 v{ST+2+p}, s35, v{FW(s,p)+i}')
    per = [3, 2, 2] if K1 else [2, 2, 2, 0]
    k.label(f'{name}_loop')
    k('s_barrier')
    r0 = reads(0)
    for x in r0[:3]: k(x)
    mix(k, mfmas(2), r0[3:] + reads(1)[:2], per)
    mix(k, mfmas(3), reads(1)[2:], per)
    k(f's_waitcnt lgkmcnt({nrd})')
    mix(k, mfmas(0), reads(2), per)
    if K1: dots(0)
    k(f's_waitcnt lgkmcnt({nrd})')
    if K1:
        upd = [f'v_xor_b32 v{r}, s34, v{r}' for r in list(range(XA, XA + 4)) + [WA, WA + 1]]
        mix(k, mfmas(1), reads(3), [4, 3, 0])
        for u in upd: k(u)
        k('s_xor_b32 s34, s34, 0x10000\ns_add_u32 s15, s15, 1\ns_cmp_lt_u32 s15, 8')
        dots(1)
    else:
        upd = [f'v_xor_b32 v{r}, s34, v{r}' for r in (XA, WA)] + ['s_xor_b32 s34, s34, 0x10000', 's_add_u32 s15, s15, 1', 's_cmp_lt_u32 s15, 8']
        mix(k, mfmas(1), reads(3) + upd, [3, 3, 5, 0])
    k('s_waitcnt lgkmcnt(0)')
    k(f's_cbranch_scc1 {name}_loop')
    if K1:
        pre = f'''v_and_b32 v3, 31, v1
        v_lshrrev_b32 v4, 5, v1
        v_lshlrev_b32 v5, 4, v3
        v_lshlrev_b32 v6, 5, v3
        v_permlane32_swap_b32 v{ST}, v{ST+1}
        v_permlane32_swap_b32 v{ST+2}, v{ST+3}
        v_permlane32_swap_b32 v{ST+4}, v{ST+5}
        s_lshl_b32 s7, s4, 9
        s_add_u32 s46, s7, {E}
        s_lshl_b32 s7, s5, 10
        s_add_u32 s47, s7, {E+1024}
        v_add_u32 v5, s46, v5
        v_add_u32 v6, s47, v6
        s_lshl_b32 s46, s5, 3
        s_lshl_b32 s47, s4, 4
        v_lshl_add_u32 v7, v4, 2, v5
        v_lshl_add_u32 v8, v4, 2, v6
        v_add_f32 v{ST}, v{ST}, v{ST+1}
        v_add_f32 v{ST+2}, v{ST+2}, v{ST+3}
        v_add_f32 v{ST+4}, v{ST+4}, v{ST+5}
        v_add_u32 v7, s46, v7
        v_add_u32 v8, s47, v8
        v_mov_b32 v62, {MODE}
        ds_write_b32 v7, v{ST}
        ds_write_b32 v8, v{ST+2}
        ds_write_b32 v8, v{ST+4} offset:8'''.split('\n')
        m2 = mfmas(2); m3 = mfmas(3)
        mix(k, m2[:2], pre, [13, 13])
        k('s_waitcnt lgkmcnt(0)\ns_barrier')
        k(f'''
        ds_read_b128 v[8:11], v5
        ds_read_b128 v[12:15], v6
        ds_read_b128 v[16:19], v6 offset:16
        ds_read_b64 v[62:63], v62
        ''')
        adr = f'''s_add_u32 s36, s32, 0
        s_addc_u32 s37, s33, 0
        s_mov_b32 s38, {6*MB}
        s_mov_b32 s39, 0x00020000
        s_lshl_b32 s7, s40, 2
        s_lshl_b32 s48, s5, 1
        s_add_u32 s7, s7, s48
        s_lshl_b32 s54, s7, 7
        s_lshl_b32 s7, s7, 6
        s_lshl_b32 s48, s41, 1
        s_add_u32 s48, s48, s4
        s_add_u32 s7, s7, s48
        s_lshl_b32 s48, s48, 2
        s_add_u32 s54, s54, s48
        s_add_u32 s54, s54, {FL_1}
        s_lshl_b32 s48, s7, 10
        s_add_u32 s49, s48, 0x10000
        s_add_u32 s50, s48, {WS_K}
        s_add_u32 s51, s48, {WS_K+0x10000}
        s_add_u32 s52, s48, {WS_V}
        s_lshl_b32 s53, s3, 7
        s_add_u32 s53, s53, {E+3072-512}
        s_add_u32 s56, s32, {WS_FL}
        s_addc_u32 s57, s33, 0
        s_mov_b32 s58, {FL_SIZE}
        s_mov_b32 s59, 0x00020000
        v_lshlrev_b32 v2, 4, v1
        v_and_b32 v7, 16, v1
        v_lshlrev_b32 v7, 12, v7
        v_and_b32 v5, 15, v1
        v_lshl_or_b32 v7, v5, 4, v7
        v_lshl_or_b32 v7, v4, 8, v7
        v_lshl_add_u32 v5, v3, 2, s53
        v_lshl_add_u32 v6, v4, 4, s53
        v_cmp_gt_u32 vcc, 32, v1
        v_mov_b32 v21, 0
        v_mov_b32 v22, 0
        v_mov_b32 v23, 0
        v_mov_b32 v25, 0
        v_mov_b32 v27, 0
        v_mov_b32 v29, 0
        v_mov_b32 v30, 0
        v_mov_b32 v31, 0'''.split('\n')
        mix(k, [m2[2], m3[0]], adr, [24, 19])
        k(f'''
        s_waitcnt lgkmcnt(0)
        v_add_f32 v8, v8, v10
        v_add_f32 v10, v9, v11
        v_add_f32 v24, v12, v16
        v_add_f32 v26, v13, v17
        v_add_f32 v28, v14, v18
        ''')
        k(m3[1])
        stats_to_ops(k, 8, 10, 20, 9, 11)
        for s in split_op(24, 12): k(s)
        k(m3[2])
        k('ds_write_b32 v5, v9')
        for s in split_op(26, 13) + split_op(28, 14): k(s)
        k(f'{MFMA} {vr(ACC,16)}, v[24:27], v[20:23], {vr(ACC,16)}')
        k(f'v_mul_f32 v10, {fbits(0.25*math.log2(math.e))}, v9')
        k('v_readfirstlane_b32 s60, v62\nv_readfirstlane_b32 s61, v63')
        k('s_waitcnt lgkmcnt(0)')
        for q in range(4):
            k(f'ds_read_b128 {vr(F+4*q)}, v6 offset:{q*32}')
        k(f'{MFMA} {vr(ACC+16,16)}, v[26:29], v[20:23], {vr(ACC+16,16)}')
        k(f'{MFMA} {vr(ACC+32,16)}, v[20:23], v[28:31], {vr(ACC+32,16)}')
        k('s_nop 3')
        k('v_mov_b32 v12, v9')
        for t, sc, so in ((0, 10, (48, 49)), (1, 12, (50, 51))):
            a = ACC + 16 * t; c = F + 16 + 8 * t
            for i in range(8):
                k(f'v_pk_mul_f32 {vr(a+2*i,2)}, {vr(a+2*i,2)}, {vr(sc,2)} op_sel_hi:[1,0]')
            for i in range(8):
                k(f'v_cvt_pk_bf16_f32 v{c+i}, v{a+2*i}, v{a+2*i+1}')
            for j in range(2):
                k(f'buffer_store_dwordx4 {vr(c+4*j)}, v2, s[36:39], s{so[j]} offen')
        a = ACC + 32
        k('s_waitcnt lgkmcnt(0)')
        for i in range(8):
            k(f'v_pk_mul_f32 {vr(a+2*i,2)}, {vr(a+2*i,2)}, {vr(F+2*i,2)}')
        for i in range(8):
            k(f'v_cvt_pk_bf16_f32 v{F+32+i}, v{a+2*i}, v{a+2*i+1}')
        for j in range(2):
            k(f'buffer_store_dwordx4 {vr(F+32+4*j)}, v7, s[36:39], s52 offen offset:{j*512}')
        k('; @T 4')
    else:
        k(f'''
        s_barrier
        s_lshl_b32 s7, s4, 11
        s_add_u32 s7, s7, {E}
        v_add_u32 v2, s7, v8
        s_lshl_b32 s7, s5, 10
        s_add_u32 s7, s7, {E+8}
        v_add_u32 v3, s7, v8
        ds_read_b64 v[10:11], v2
        ds_read_b64 v[12:13], v2 offset:1024
        ds_read_b32 v24, v3
        ds_read_b32 v26, v3 offset:2048
        ''')
        adr = f'''s_add_u32 s36, s32, {WS_H1}
        s_addc_u32 s37, s33, 0
        s_mov_b32 s38, {H1_SIZE}
        s_mov_b32 s39, 0x00020000
        s_lshl_b32 s7, s42, 2
        s_lshl_b32 s48, s4, 1
        s_add_u32 s7, s7, s48
        s_lshl_b32 s54, s7, 6
        s_mul_i32 s7, s7, 112
        s_lshl_b32 s48, s43, 3
        s_add_u32 s7, s7, s48
        s_add_u32 s54, s54, s48
        s_lshl_b32 s48, s5, 2
        s_add_u32 s54, s54, s48
        s_add_u32 s54, s54, {FL_4}
        s_lshl_b32 s48, s5, 1
        s_add_u32 s7, s7, s48
        s_lshl_b32 s48, s7, 10
        s_add_u32 s49, s48, 4096
        s_add_u32 s50, s48, {112*1024}
        s_add_u32 s51, s48, {112*1024+4096}
        v_mov_b32 v17, 0
        v_mov_b32 v18, 0
        v_mov_b32 v19, 0
        v_mov_b32 v21, 0
        v_mov_b32 v22, 0
        v_mov_b32 v23, 0
        v_mov_b32 v25, 0
        v_mov_b32 v27, 0
        v_mov_b32 v28, 0
        v_mov_b32 v29, 0'''.split('\n')
        mix(k, mfmas(2), adr, [11, 8, 7, 5])
        k('s_waitcnt lgkmcnt(0)\nv_mov_b32 v16, v10\nv_mov_b32 v20, v12\nv_mov_b32 v10, v11\nv_mov_b32 v12, v13')
        def epi(t):
            j, p = t >> 1, t & 1
            a = ACC + 16 * t; o = F + 8 * t
            e = [f'v_mul_f32 v{a+i}, v{a+i}, v{10+2*j}' for i in range(16)]
            e2 = []
            for i in range(8):
                e2 += [e[2*i], e[2*i+1]]
            e2 += [f'v_cvt_pk_bf16_f32 v{o+i}, v{a+2*i}, v{a+2*i+1}' for i in range(8)]
            e2 += [f'v_pk_max_i16 v{o+i}, v{o+i}, 0' for i in range(8)]
            e2 += [f'buffer_store_dwordx4 {vr(o+4*jj)}, v8, s[36:39], s{48+2*j+p} offen offset:{jj*1024}' for jj in range(2)]
            return e2
        def fin(t):
            j, p = t >> 1, t & 1
            a = ACC + 16 * t
            return [mf(3, j, p), f'{MFMA} {vr(a,16)}, {vr(24+2*p)}, {vr(16+4*j)}, {vr(a,16)}']
        for m in fin(0) + fin(1): k(m)
        mix(k, fin(2) + fin(3), epi(0), [9, 9, 9, 7])
        for t in (1, 2, 3):
            for x in epi(t): k(x)
        k('s_barrier')
        k('; @T 14')

def res_addr(k):
    k(blk3)
    k(f'''
    s_and_b32 s4, s3, 1
    s_bfe_u32 s5, s3, 0x10001
    v_lshlrev_b32 v7, 4, v1
    v_and_b32 v2, 31, v1
    v_lshlrev_b32 v6, 10, v2
    v_lshrrev_b32 v2, 5, v1
    v_lshl_or_b32 v6, v2, 4, v6
    s_lshl_b32 s46, s42, 1
    s_add_u32 s46, s46, s4
    s_lshl_b32 s47, s43, 1
    s_add_u32 s47, s47, s5
    s_lshl_b32 s48, s46, 15
    s_lshl_b32 s7, s47, 6
    s_add_u32 s49, s48, s7
    s_lshl_b32 s7, s47, 11
    s_add_u32 s48, s48, s7
    ''')

def res_cons(k, K3, pub):
    name = 'c3' if K3 else 'c5'
    XA, WA, F, ACC = 16, 17, 32, 96
    NC = 4 if K3 else 14
    res_addr(k)
    k(f'''
    s_mov_b32 s34, 0x8000
    s_lshl_b32 s7, s4, 13
    v_or_b32 v{XA}, s7, v7
    ''')
    w_addr(k, WA, 2)
    if K3:
        srd(k, 36, 32, 33, WS_H, 10 * MB)
        k(f'''
        s_lshl_b32 s50, s46, 12
        s_lshr_b32 s7, s47, 2
        s_lshl_b32 s7, s7, 10
        s_add_u32 s50, s50, s7
        s_and_b32 s7, s47, 3
        s_lshl_b32 s7, s7, 2
        s_add_u32 s50, s50, s7
        s_add_u32 s50, s50, {WS_ST-WS_H}
        s_mov_b32 s35, 0x3f803f80
        v_mov_b32 v2, 0
        v_mov_b32 v3, 0
        ''')
    else:
        srd(k, 36, 28, 29, 0, 2 * MB)
    k('s_mov_b32 s15, 0')
    for i in range(8):
        k(f'v_lshlrev_b32 v{ACC+2*i}, 16, v{RES+i}\nv_and_b32 v{ACC+2*i+1}, 0xffff0000, v{RES+i}')
    pub()
    if K3:
        k(f'''
        s_lshl_b32 s54, s46, 6
        s_lshl_b32 s7, s47, 2
        s_add_u32 s54, s54, s7
        s_add_u32 s54, s54, {FL_3}
        ''')
    def reads(s):
        k(f'ds_read_b128 {vr(F+8*s)}, v{XA} offset:{s*1024}')
        for sec in range(2):
            k(f'ds_read_b64_tr_b16 {vr(F+8*s+4+2*sec, 2)}, v{WA} offset:{16384+s*2048+sec*512}')
    k.label(f'{name}_loop')
    k('s_barrier')
    for s in range(4):
        reads(s)
    for s in range(8):
        left = min(8, s + 4) - s - 1
        k(f's_waitcnt lgkmcnt({3*left})')
        k(f'{MFMA} {vr(ACC,16)}, {vr(F+8*s+4)}, {vr(F+8*s)}, {vr(ACC,16)}')
        if s + 4 < 8:
            reads(s + 4)
        if s == 4:
            k(f'v_xor_b32 v{XA}, s34, v{XA}\nv_xor_b32 v{WA}, s34, v{WA}\ns_xor_b32 s34, s34, 0x10000')
        if s == 5:
            k(f's_add_u32 s15, s15, 1\ns_cmp_lt_u32 s15, {NC}')
    k(f's_cbranch_scc1 {name}_loop')
    k('s_nop 10')
    for i in range(8):
        k(f'v_cvt_pk_bf16_f32 v{RES+i}, v{ACC+2*i}, v{ACC+2*i+1}')
    for j in range(2):
        if K3:
            k(f'buffer_store_dwordx4 {vr(RES+4*j)}, v7, s[36:39], s48 offen offset:{j*1024}')
        else:
            k(f'buffer_store_dwordx4 {vr(RES+4*j)}, v6, s[36:39], s49 offen offset:{j*32}')
    if K3:
        for i in range(8):
            k(f'v_dot2c_f32_bf16 v2, s35, v{RES+i}\nv_dot2c_f32_bf16 v3, v{RES+i}, v{RES+i}')
        k('''
        s_nop 2
        v_permlane32_swap_b32 v2, v3
        v_add_f32 v2, v2, v3
        buffer_store_dword v2, v7, s[36:39], s50 offen
        s_barrier
        ''')

def att_setup(k):
    QF, KA, VA, VI = 4, 8, 9, 10
    KF, VF, P, S, NEG, X, Y = 16, 24, 40, 48, 80, 96, 112
    k(f'''
    s_lshr_b32 s42, s41, 3
    s_lshl_b32 s7, s40, 2
    s_add_u32 s42, s42, s7
    s_and_b32 s43, s41, 7
    s_lshl_b32 s43, s43, 3
    s_add_u32 s43, s43, s3
    s_sub_u32 s43, s43, 4
    v_lshlrev_b32 v{KA}, 4, v1
    s_lshl_b32 s7, s3, 10
    s_add_u32 s7, s7, {CSB-4096}
    v_add_u32 v{QF}, s7, v{KA}
    s_mov_b32 s10, {8*MB}
    s_mov_b32 s11, 0x00020000
    ''')
    k(f'''
    v_and_b32 v2, 15, v1
    v_lshlrev_b32 v2, 4, v2
    v_lshrrev_b32 v3, 5, v1
    v_lshl_or_b32 v2, v3, 8, v2
    v_and_b32 v3, 16, v1
    v_cmp_eq_u32 vcc, 0, v3
    v_mov_b32 v3, {ONES}
    v_mov_b32 v11, 65536
    v_cndmask_b32 v3, v3, v11, vcc
    v_add_u32 v{VA}, v2, v3
    v_mov_b32 v11, 8192
    v_cndmask_b32 v{VI}, 0, v11, vcc
    s_mov_b32 s15, 8
    s_mov_b32 s47, 0
    s_mov_b32 s49, 7
    s_mov_b32 s48, {fbits(2.0**40)}
    s_mov_b32 s8, s32
    s_mov_b32 s9, s33
    ''')
    for r in list(range(X, X + 16)) + list(range(P + 4, P + 8)) + list(range(VF + 12, VF + 16)):
        k(f'v_mov_b32 v{r}, 0')

def attention(k):
    name = 'att'
    QF, KA, VA, VI = 4, 8, 9, 10
    KF, VF, P, S, NEG, X, Y = 16, 24, 40, 48, 80, 96, 112
    k(f'''
    ; @T 5
    s_barrier
    ; @T 6
    ds_read_b128 {vr(QF)}, v{QF}
    ds_read_b128 {vr(KF)}, v{KA}
    ds_read_b128 {vr(KF+4)}, v{KA} offset:1024
    ds_read_b128 {vr(VF)}, v{VA}
    ds_read_b128 {vr(VF+4)}, v{VA} offset:512
    s_waitcnt lgkmcnt(3)
    {MFMA} {vr(S+16,16)}, {vr(KF)}, {vr(QF)}, 0
    s_nop 11
    ''')
    def rowmax(o, dst, src, first):
        if first:
            o(f'v_max3_f32 v{dst}, v{src}, v{src+1}, v{src+2}')
            rest = list(range(src + 3, src + 16))
        else:
            rest = list(range(src, src + 16))
        while len(rest) >= 2:
            o(f'v_max3_f32 v{dst}, v{dst}, v{rest[0]}, v{rest[1]}')
            rest = rest[2:]
        if rest:
            o(f'v_max_f32 v{dst}, v{dst}, v{rest[0]}')
    rowmax(k, 2, S + 16, True)
    k(f'''
    v_mov_b32 v3, v2
    s_nop 1
    v_permlane32_swap_b32 v2, v3
    v_max_f32 v2, v2, v3
    ''')
    for r in range(16):
        k(f'v_sub_f32 v{NEG+r}, 0, v2')
    k(f'''
    s_nop 1
    {MFMA} {vr(S,16)}, {vr(KF)}, {vr(QF)}, {vr(NEG,16)}
    s_nop 11
    ''')
    def slot(t):
        s = S + 16 * (t & 1); sn = S + 16 * ((t + 1) & 1)
        cur = Y if t < 4 else X
        prev = X if t < 4 else Y
        e = lambda i: k(f'v_exp_f32 v{s+i}, v{s+i}')
        c = lambda i: k(f'v_cvt_pk_bf16_f32 v{P+i}, v{s+2*i}, v{s+2*i+1}')
        a1 = prev if t % 4 == 0 else cur
        vprev = VF + 8 * ((t + 1) & 1)
        vcur = VF + 8 * (t & 1)
        e(0); e(1)
        k(f'{MFMA} {vr(a1,16)}, {vr(vprev+4)}, {vr(P+4)}, {vr(a1,16)}')
        k(f'ds_read_b128 {vr(vprev)}, v{VA} offset:{(t+1)*1024}')
        k(f'ds_read_b128 {vr(vprev+4)}, v{VA} offset:{(t+1)*1024+512}')
        e(2); e(3); e(4); e(5)
        k('s_waitcnt lgkmcnt(2)')
        k(f'{MFMA} {vr(sn,16)}, {vr(KF+4*((t+1)&1))}, {vr(QF)}, {vr(NEG,16)}')
        k(f'ds_read_b128 {vr(KF+4*(t&1))}, v{KA} offset:{(t+2)*1024}')
        e(6); e(7)
        c(0); c(1); c(2); c(3)
        e(8); e(9)
        if t % 4 == 0:
            k(f'v_cmp_lt_f32 vcc, s48, v{prev+8}')
            k(f's_cbranch_vccnz {name}_rare{t}')
            k.label(f'{name}_cont{t}')
            k(f'{MFMA} {vr(cur,16)}, {vr(vcur)}, {vr(P)}, {vr(prev,16)}')
        else:
            k(f'{MFMA} {vr(cur,16)}, {vr(vcur)}, {vr(P)}, {vr(cur,16)}')
        if t == 7:
            k(f'v_add_u32 v{KA}, 0x2000, v{KA}\nv_add_u32 v{VA}, v{VI}, v{VA}')
        for i in range(10, 16): e(i)
        if t == 7:
            k('s_sub_u32 s15, s15, 1\ns_cmp_lg_u32 s15, 0')
        for i in range(4, 8): c(i)
    k.label(f'{name}_loop')
    k(f's_cmp_eq_u32 s15, s49\ns_cbranch_scc1 {name}_sync')
    k.label(f'{name}_slot0')
    for t in range(8):
        if t == 4:
            k.label(f'{name}_slot4')
        slot(t)
    k(f's_cbranch_scc1 {name}_loop')
    k('; @T 7')
    k(f'''
    s_nop 0
    {MFMA} {vr(X,16)}, {vr(VF+12)}, {vr(P+4)}, {vr(X,16)}
    s_lshl_b32 s7, s43, 5
    s_add_u32 s7, s7, s42
    s_lshl_b32 s45, s7, 10
    s_lshl_b32 s54, s7, 2
    v_lshlrev_b32 v2, 4, v1
    s_add_u32 s45, s45, {WS_O}
    s_add_u32 s54, s54, {FL_2}
    s_nop 4
    v_cmp_lt_f32 vcc, s48, v{X+8}
    s_cbranch_vccnz {name}_rare8
    ''')
    k.label(f'{name}_cont8')
    k(f'v_rcp_f32 v3, v{X+8}\ns_nop 0')
    for i in range(8):
        k(f'v_mul_f32 v{X+i}, v{X+i}, v3')
    for i in range(4):
        k(f'v_cvt_pk_bf16_f32 v{P+i}, v{X+2*i}, v{X+2*i+1}')
    k('s_waitcnt vmcnt(0)')
    k(f'buffer_store_dwordx4 {vr(P)}, v2, s[8:11], s45 offen sc1')
    k('s_waitcnt lgkmcnt(0)\ns_setprio 0\ns_barrier')
    side = []
    o = lambda s: side.append(s)
    o(f'''
    {name}_sync:
    s_setprio 0
    s_cmp_lg_u32 s49, 7
    s_mov_b32 s49, -1
    s_cbranch_scc1 {name}_slot0
    s_barrier
    s_cmp_lt_u32 s3, 8
    s_cbranch_scc1 {name}_slot0
    s_setprio {1 if OPT.get('bal', 1) >= 0 else 0}
    s_mov_b32 s49, {OPT.get('bal', 1)}
    s_branch {name}_slot0
    ''')
    for t in (0, 4, 8):
        snap = X if t == 4 else Y
        base = 0 if t == 4 else 4
        o(f'''
        {name}_rare{t}:
        s_add_u32 s47, s47, 1
        s_cmp_gt_u32 s47, 64
        s_cbranch_scc1 {name}_cont{t}
        ''')
        if t != 4:
            o(f'''
            v_subrev_u32 v{KA}, 0x2000, v{KA}
            v_sub_u32 v{VA}, v{VA}, v{VI}
            s_add_u32 s15, s15, 1
            ''')
        o('s_waitcnt lgkmcnt(0)\ns_nop 11')
        for i in range(4):
            o(f'''
            ds_read_b128 {vr(KF)}, v{KA} offset:{(base+i)*1024}
            s_waitcnt lgkmcnt(0)
            {MFMA} {vr(S,16)}, {vr(KF)}, {vr(QF)}, {vr(NEG,16)}
            s_nop 11
            ''')
            rowmax(o, 2, S, i == 0)
        o(f'''
        v_mov_b32 v3, v2
        s_nop 1
        v_permlane32_swap_b32 v2, v3
        v_max3_f32 v2, v2, v3, 0
        v_sub_f32 v3, 0, v2
        v_exp_f32 v3, v3
        ds_read_b128 {vr(KF)}, v{KA} offset:{base*1024}
        ds_read_b128 {vr(KF+4)}, v{KA} offset:{(base+1)*1024}
        ds_read_b128 {vr(VF)}, v{VA} offset:{base*1024}
        ds_read_b128 {vr(VF+4)}, v{VA} offset:{base*1024+512}
        ''')
        for r in range(16):
            o(f'v_mul_f32 v{snap+r}, v{snap+r}, v3')
            o(f'v_sub_f32 v{NEG+r}, v{NEG+r}, v2')
        for r in range(4):
            o(f'v_mov_b32 v{P+4+r}, 0')
        o(f'''
        s_waitcnt lgkmcnt(0)
        {MFMA} {vr(S,16)}, {vr(KF)}, {vr(QF)}, {vr(NEG,16)}
        s_nop 11
        s_branch {name}_slot{base}
        ''')
    SIDE.append('\n'.join(side))

def extra_waves(k):
    k(f'''
    v_mov_b32 v12, 0x3f803f80
    v_mov_b32 v13, v12
    v_mov_b32 v14, v12
    v_mov_b32 v15, v12
    v_lshlrev_b32 v2, 4, v0
    v_add_u32 v2, {ONES-8192}, v2
    ds_write_b128 v2, v[12:15]
    ds_write_b128 v2, v[12:15] offset:4096
    ds_write_b128 v2, v[12:15] offset:8192
    s_mov_b32 s15, 0
    s_cmp_lg_u32 s3, 8
    s_waitcnt lgkmcnt(0)
    s_cbranch_scc1 a1_b
    s_add_u32 s56, s32, {WS_FL}
    s_addc_u32 s57, s33, 0
    s_mov_b32 s58, {FL_SIZE}
    s_mov_b32 s59, 0x00020000
    buffer_load_dword v3, off, s[56:59], 0 sc1
    s_getreg_b32 s7, hwreg(HW_REG_XCC_ID)
    s_and_b32 s7, s7, 15
    s_lshl_b32 s48, s40, 7
    s_add_u32 s48, s48, {FL_HELLO}
    s_lshl_b32 s49, s41, 2
    s_add_u32 s49, s49, s48
    v_and_b32 v4, 31, v1
    v_lshlrev_b32 v4, 2, v4
    s_waitcnt vmcnt(0)
    v_readfirstlane_b32 s60, v3
    s_add_u32 s60, s60, {EPOCH_STEP}
    s_add_u32 s50, s60, 1
    s_add_u32 s61, s50, s7
    v_mov_b32 v3, s61
    s_mov_b64 exec, 1
    buffer_store_dword v3, off, s[56:59], s49 sc1
    s_mov_b64 exec, -1
    s_barrier
    s_barrier
    s_barrier
    s_barrier
    s_mov_b32 s15, 4
    s_mov_b32 s62, {SPIN}
    a1_pl:
    buffer_load_dword v3, v4, s[56:59], s48 offen sc1
    s_sub_u32 s62, s62, 1
    s_waitcnt vmcnt(0)
    v_subrev_u32 v5, s50, v3
    v_cmp_lt_u32 vcc, 15, v5
    s_cbranch_scc1 a1_pd
    s_cbranch_vccnz a1_pl
    a1_pd:
    v_cmp_ne_u32 vcc, s61, v3
    v_mov_b32 v4, {MODE}
    v_mov_b32 v6, s60
    s_cmp_eq_u64 vcc, 0
    s_cselect_b32 s7, {0 if OPT.get('slow') else 1}, 0
    v_mov_b32 v7, s7
    ds_write_b64 v4, v[6:7]
    s_waitcnt lgkmcnt(0)
    a1_b:
    s_barrier
    s_add_u32 s15, s15, 1
    s_cmp_lt_u32 s15, 9
    s_cbranch_scc1 a1_b
    ''')
    get_mode(k, 2)

def fused():
    del SIDE[:]
    k = Kernel(NAME, (256, 1, 1), (768, 1, 1), lds=163840, vgpr=168, sgpr=64)
    k(f'''
    s_load_dwordx16 s[16:31], s[0:1], 0
    s_load_dwordx2 s[32:33], s[0:1], 64
    s_cmp_ge_u32 s2, 256
    s_cbranch_scc1 {k.name}_end
    v_lshrrev_b32 v2, 6, v0
    v_and_b32 v1, 63, v0
    v_readfirstlane_b32 s3, v2
    s_and_b32 s40, s2, 7
    s_lshr_b32 s41, s2, 3
    s_cmp_ge_u32 s3, 8
    s_cbranch_scc1 xa1
    s_cmp_ge_u32 s3, 4
    s_cbranch_scc1 c1
    ''')
    loaders(k)
    k.label('xa1')
    extra_waves(k)
    att_setup(k)
    k('s_branch att')
    k.label('c1')
    ln_cons(k, True)
    res_addr(k)
    srd(k, 36, 16, 17, 0, 2 * MB)
    k('s_mov_b32 s55, s49\nv_mov_b32 v12, v6')
    att_setup(k)
    publish(k, 'c1', 2, 54, True)
    for j in range(2):
        k(f'buffer_load_dwordx4 {vr(RES+4*j)}, v12, s[36:39], s55 offen offset:{j*32}')
    k.label('att')
    attention(k)
    k('s_cmp_lt_u32 s3, 8\ns_cbranch_scc1 c3')
    publish(k, 'a2', 2, 54, False)
    k('s_endpgm')
    k.label('c3')
    def pub2():
        publish(k, 'c2', 4, 54, False)
        k('; @T 8')
    res_cons(k, True, pub2)
    k('s_cmp_ge_u32 s41, 28\ns_cbranch_scc1 c4_skip')
    ln_cons(k, False)
    k.label('c5')
    def pub4():
        k('s_cmp_ge_u32 s41, 28\ns_cbranch_scc1 c5_np')
        publish(k, 'c4', 4, 54, True)
        k.label('c5_np')
        k('; @T 15')
    res_cons(k, False, pub4)
    k('s_endpgm')
    k.label('c4_skip')
    publish(k, 'c3s', 2, 54, True)
    k('s_branch c5')
    for s in SIDE: k(s)
    k.label(f'{k.name}_end')
    k('s_endpgm')
    return k

def build():
    ks = [fused()]
    bad = []
    for k in ks:
        bad += hazard.check('', k.lines)
    for b in bad:
        print('HAZARD', b)
    return ks

def emit1(k, hdr=''):
    g = k.grid; b = k.block
    o = hdr + f'; @launch grid=({g[0]},{g[1]},{g[2]}) block=({b[0]},{b[1]},{b[2]}) lds={k.lds}\n'
    o += '.amdgcn_target "amdgcn-amd-amdhsa--gfx950"\n.text\n' + k.text()
    o += '.section .rodata,"a"\n.p2align 6\n' + k.desc()
    return o

if __name__ == '__main__':
    for o in sys.argv[2:]:
        kv = o.split('=')
        OPT[kv[0]] = int(kv[1]) if len(kv) > 1 else 1
    ks = build()
    hdr = '; generated by tools/gen3.py: LN+QKV, attention, Wo+residual, FFN1, FFN2+residual in one launch\n'
    out = sys.argv[1] if len(sys.argv) > 1 else 'sequential_preLN__softmax_full_mha__dense_activation_relu__prompt.s'
    open(out, 'w').write(emit(ks, hdr) if OPT.get('list') else emit1(ks[0], hdr))
```
